```python
import torch

def _softmax(x, axis=-1):
    return torch.softmax(x, dim=axis)
def _gelu(x):
    return torch.nn.functional.gelu(x, approximate="tanh")
def _silu(x):
    return torch.nn.functional.silu(x)
def _sigmoid(x):
    return torch.sigmoid(x)
def _layernorm(x, axis=-1, eps=1e-5):
    m = x.mean(dim=axis, keepdim=True)
    v = x.var(dim=axis, keepdim=True, unbiased=False)
    return (x - m) / torch.sqrt(v + eps)
def _scatter_add(tgt, idx, src, axis=0):
    return tgt.clone().index_add_(axis, idx, src)
def _segment_sum(src, seg, n):
    out = torch.zeros((n,) + src.shape[1:], dtype=src.dtype)
    return out.index_add_(0, seg, src)
def _pad(x, pw):
    flat = tuple(v for pair in reversed(pw) for v in pair)
    return torch.nn.functional.pad(x, flat)

kernel_name = 'gated_mix__ssm_conv_s5__glu_gated_geglu__prompt'

def setup_inputs():

    _w = (lambda a: (lambda t: t.to(torch.bfloat16) if t.is_floating_point() else t)(torch.as_tensor(a)))
    def _A_setup():
        B, S, D = 1, 2048, 1024
        P = D
        Lambda_re = -0.5 * (lambda _x: torch.exp(torch.as_tensor(_x)))((lambda *s: torch.randn(*s, dtype=torch.bfloat16) * 0.4)(P))
        Lambda_im = (lambda *s: torch.randn(*s, dtype=torch.bfloat16) * 0.8)(P) * 1.0
        B_re = (lambda *s: torch.randn(*s, dtype=torch.bfloat16) * 0.4)(P, D) * (D ** -0.5)
        B_im = (lambda *s: torch.randn(*s, dtype=torch.bfloat16) * 0.4)(P, D) * (D ** -0.5)
        C_re = (lambda *s: torch.randn(*s, dtype=torch.bfloat16) * 0.4)(D, P) * (P ** -0.5)
        C_im = (lambda *s: torch.randn(*s, dtype=torch.bfloat16) * 0.4)(D, P) * (P ** -0.5)
        log_dt = (lambda *s: torch.randn(*s, dtype=torch.bfloat16) * 0.4)(P) * 0.3 - 2.0
        Dskip = (lambda *s: torch.randn(*s, dtype=torch.bfloat16) * 0.1)(D)
        return {
            "x": _w((lambda *s: torch.randn(*s, dtype=torch.bfloat16) * 0.05)(B, S, D)),
            "Lambda_re": _w(Lambda_re),
            "Lambda_im": _w(Lambda_im),
            "B_re": _w(B_re),
            "B_im": _w(B_im),
            "C_re": _w(C_re),
            "C_im": _w(C_im),
            "log_dt": _w(log_dt),
            "Dskip": _w(Dskip),
        }
    _A_in = _A_setup()

    def _B_setup():
        B, S, Dm, Df = 1, 2048, 1024, 3584
        return {
            "x": _w((lambda *s: torch.randn(*s, dtype=torch.bfloat16) * 0.05)(B, S, Dm)),
            "w_gate": _w((lambda *s: torch.randn(*s, dtype=torch.bfloat16) * 3.2)(Dm, Df) * (Dm ** -0.5)),
            "w_up": _w((lambda *s: torch.randn(*s, dtype=torch.bfloat16) * 3.2)(Dm, Df) * (Dm ** -0.5)),
            "w_down": _w((lambda *s: torch.randn(*s, dtype=torch.bfloat16) * 3.2)(Df, Dm) * (Df ** -0.5)),
        }
    _B_in = _B_setup()

    return {
        "A_x": _A_in["x"],
        "A_Lambda_re": _A_in["Lambda_re"],
        "A_Lambda_im": _A_in["Lambda_im"],
        "A_B_re": _A_in["B_re"],
        "A_B_im": _A_in["B_im"],
        "A_C_re": _A_in["C_re"],
        "A_C_im": _A_in["C_im"],
        "A_log_dt": _A_in["log_dt"],
        "A_Dskip": _A_in["Dskip"],
        "B_x": _B_in["x"],
        "B_w_gate": _B_in["w_gate"],
        "B_w_up": _B_in["w_up"],
        "B_w_down": _B_in["w_down"],
        "gate_w": _w((lambda *s: torch.randn(*s, dtype=torch.bfloat16) * 0.05)(1024) * 16.0),
    }

def reference(A_x, A_Lambda_re, A_Lambda_im, A_B_re, A_B_im, A_C_re, A_C_im, A_log_dt, A_Dskip, B_x, B_w_gate, B_w_up, B_w_down, gate_w):
    def _A_ref(x, Lambda_re, Lambda_im, B_re, B_im, C_re, C_im, log_dt, Dskip):
        Bsz, L, H = x.shape
        Lam = Lambda_re + 1j * Lambda_im
        Bmat = B_re + 1j * B_im
        Cmat = C_re + 1j * C_im
        dt = torch.exp(log_dt)
        Lam_bar = torch.exp(dt * Lam)
        B_bar = ((Lam_bar - 1.0) / Lam)[:, None] * Bmat
        Bu = torch.einsum("bld,pd->blp", x + 0j, B_bar)
        h = torch.zeros_like(Bu[:, 0, :])
        hs = []
        for t in range(L):
            h = Lam_bar[None, :] * h + Bu[:, t, :]
            hs.append(h)
        hseq = torch.stack(hs, 1)
        y = 2.0 * torch.einsum("blp,dp->bld", hseq, Cmat).real + x * Dskip[None, None, :]
        return y

    def _B_ref(x, w_gate, w_up, w_down):
        g = torch.einsum("bsd,df->bsf", x, w_gate)
        u = torch.einsum("bsd,df->bsf", x, w_up)
        h = _gelu(g) * u
        return torch.einsum("bsf,fd->bsd", h, w_down)

    x = A_x
    g = _sigmoid((x * gate_w).sum(-1, keepdims=True))
    a = _A_ref(x, A_Lambda_re, A_Lambda_im, A_B_re, A_B_im, A_C_re, A_C_im, A_log_dt, A_Dskip)
    b = _B_ref(x, B_w_gate, B_w_up, B_w_down)
    return g * a + (1 - g) * b
```

```python
class Asm:
    def __init__(self):
        self.lines = []
    def __call__(self, s=""):
        for l in s.split("\n"):
            self.lines.append(l)
    def text(self):
        import re
        out = []
        for l in self.lines:
            if not l.strip(): continue
            m = re.fullmatch(r"\s*s_waitcnt lgkmcnt\((\d+)\)\s*", l)
            if m and out and re.fullmatch(r"\s*s_waitcnt vmcnt\(\d+\)\s*", out[-1]):
                out[-1] = out[-1].rstrip() + f" lgkmcnt({m.group(1)})"
                continue
            out.append(l)
        return "\n".join(out) + "\n"

def header(launch_lines):
    return "".join("; " + l + "\n" for l in launch_lines) + '.amdgcn_target "amdgcn-amd-amdhsa--gfx950"\n.text\n'

def kernel_begin(name):
    return f".globl {name}\n.p2align 8\n.type {name},@function\n{name}:\n"

def kernel_desc(name, vgpr, accum, sgpr=102, kernarg=136):
    return f""".section .rodata,"a"
.p2align 6
.amdhsa_kernel {name}
  .amdhsa_next_free_vgpr {vgpr}
  .amdhsa_next_free_sgpr {sgpr}
  .amdhsa_accum_offset {accum}
  .amdhsa_group_segment_fixed_size 0
  .amdhsa_kernarg_size {kernarg}
  .amdhsa_user_sgpr_count 2
  .amdhsa_user_sgpr_kernarg_segment_ptr 1
  .amdhsa_system_sgpr_workgroup_id_x 1
.end_amdhsa_kernel
.text
"""
```

```python
from asmlib import *
import math, struct

NKB = 176
WS_H = 0
WS_GATE = 0x1600000
WS_GRAN = 0x1610000
WS_EPOCH = 0x1640000
WS_STAMP = 0x1700000

def f2u(x):
    return struct.unpack("<I", struct.pack("<f", x))[0]

class Stream:
    def __init__(self, a):
        self.a = a
        self.issued = []
        self.done = 0
        self.pos = []
        self.now = 0
        self.age = None
    def ds(self, text, id=None):
        self.a(text)
        self.issued.append(id)
        self.pos.append(self.now)
    def need(self, ids):
        last = -1
        for i in ids:
            idx = max(k for k, x in enumerate(self.issued) if x == i) if i in self.issued else -1
            last = max(last, idx)
        if last >= self.done:
            if self.age is not None:
                while last + 1 < len(self.issued) and self.pos[last + 1] <= self.now - self.age: last += 1
            n = len(self.issued) - 1 - last
            n = min(n, 15)
            self.a(f"s_waitcnt lgkmcnt({n})")
            self.done = len(self.issued) - n
    def drain(self):
        self.done = len(self.issued)

def reg(r, n=4):
    k, b = r
    return f"{k}[{b}:{b+n-1}]" if n > 1 else f"{k}{b}"

S_W = 3
S_PTR = 16
def ptr(i): return S_PTR + 2*i
P_X, P_LRE, P_LIM, P_BRE, P_BIM, P_CRE, P_CIM, P_LDT, P_DSK, P_BX, P_WG, P_WU, P_WD, P_GW, P_OUT, P_DBG, P_WS = range(17)
SRD_X, SRD_W, SRD_B, SRD_T = 52, 56, 60, 64
S_OX, S_OW, S_OB = 68, 76, 84
S_MX, S_MW, S_MB = 89, 90, 91
S_M, S_C, S_XCD, S_RH, S_CC, S_N = 4, 5, 6, 7, 8, 9
S_CNT = 10
S_T0, S_T1, S_T2, S_T3 = 11, 12, 13, 14
S_K0 = 92
S_K1 = 94
S_HLO, S_HHI = 96, 97
S_NONCE = 98
S_ST = 50
V_LANE16 = 1
V_DX0, V_DX1, V_DW, V_DB = 2, 3, 4, 5
V_AX = 6
V_AW = 10
V_AB = 14
V_EPO = 18
V_TMP = 20
V_ACC0 = 56
A_ACC_N = 88
A_X0, A_X1, A_RING = 88, 120, 152

LDS_PT = 139264
LDS_F = 142336
LDS_NONCE = 152576

class P1:
    def __init__(self, typ, opt):
        self.typ = typ
        self.opt = opt
        A = typ == "A"
        if A:
            self.groups = [("H", 0, 0), ("H", 0, 1)] + [x for f in range(4) for x in (("G", f, 0), ("G", f, 1))]
        else:
            self.groups = [("H", 4, 0), ("H", 4, 1), ("G", 0, 0), ("G", 0, 1), ("G", 1, 0), ("G", 1, 1),
                           ("S", 0, 0), ("S", 0, 1), ("S", 1, 0), ("S", 1, 1)]
        self.tile = {}
        v = V_ACC0
        ssm = [("H", 0 if A else 4, range(4))] + ([] if A else [("S", 0, range(8)), ("S", 1, range(8))])
        for kind, idx, jjs in ssm:
            for jj in jjs:
                self.tile[(kind, idx, 0, jj)] = ("v", v); self.tile[(kind, idx, 1, jj)] = ("v", v+4); v += 8
        nf = 4 if A else 2
        na = 0
        ups = [(f, jj) for jj in reversed(range(8)) for f in range(nf)]
        left = []
        for (f, jj) in ups:
            if na < A_ACC_N:
                self.tile[("G", f, 1, jj)] = ("a", na); na += 4
            else:
                left.append(("G", f, 1, jj))
        gates = [(f, jj) for jj in reversed(range(8)) for f in range(nf)]
        for (f, jj) in gates:
            if na < A_ACC_N:
                self.tile[("G", f, 0, jj)] = ("a", na); na += 4
            else:
                left.append(("G", f, 0, jj))
        left.sort(key=lambda t: (t[3], t[1], t[2]))
        for t in left:
            self.tile[t] = ("v", v); v += 4
        assert v == 256 and na == A_ACC_N, (v, na)

    def group_loads(self, gi, st):
        kk, g = divmod(gi, 10)
        kind, idx, part = self.groups[g]
        slot = A_RING + 4*(gi % 5)
        A = self.typ == "A"
        if kind == "G":
            off = (st*32768 + part*16384 if A else st*16384 + part*8192) + kk*4096
            return [f"ds_read_b64_tr_b16 a[{slot}:{slot+1}], v{V_AW+idx} offset:{off}",
                    f"ds_read_b64_tr_b16 a[{slot+2}:{slot+3}], v{V_AW+idx} offset:{off+1024}"]
        if A:
            return [f"ds_read_b128 a[{slot}:{slot+3}], v{V_AB+kk} offset:{st*4096 + part*2048}"]
        if kind == "H":
            return [f"ds_read_b128 a[{slot}:{slot+3}], v{V_AB+kk} offset:{st*20480 + part*10240 + 4096}"]
        return [f"ds_read_b128 a[{slot}:{slot+3}], v{V_AB+2+kk} offset:{st*20480 + part*10240 + idx*1024}"]

    def x_load(self, kk, jj, st):
        d = (A_X0 if kk == 0 else A_X1) + 4*jj
        return f"ds_read_b128 a[{d}:{d+3}], v{V_AX + kk*2 + (jj >> 2)} offset:{st*32768 + (jj & 3)*2048}"

    def group_mfmas(self, gi, zero):
        kk, g = divmod(gi, 10)
        kind, idx, part = self.groups[g]
        slot = ("a", A_RING + 4*(gi % 5))
        jjs = list(range(4)) if kind == "H" else list(range(8))
        if g % 2 == 1 and self.opt.get("snake", True):
            jjs = jjs[::-1]
        out = []
        for jj in jjs:
            t = self.tile[(kind, idx, part, jj)]
            x = ("a", (A_X0 if kk == 0 else A_X1) + 4*jj)
            c = "0" if (zero and kk == 0) else reg(t)
            if kind == "G":
                txt = f"v_mfma_f32_16x16x32_bf16 {reg(t)}, {reg(slot)}, {reg(x)}, {c}"
            else:
                txt = f"v_mfma_f32_16x16x32_bf16 {reg(t)}, {reg(x)}, {reg(slot)}, {c}"
            out.append((txt, [("g", gi), ("x", kk, jj)]))
        return out

    def dma_list(self, st):
        A = self.typ == "A"
        L = []
        for i in range(8):
            pre = [f"s_add_u32 m0, s{S_MX}, {st*32768 + (i//4)*4096}"] if i % 4 == 0 else []
            L.append((pre, f"buffer_load_dwordx4 v{V_DX0 + (i & 1)}, s[{SRD_X}:{SRD_X+3}], s{S_OX+i} offen offset:{1024*(i&3)} lds"))
        for i in range(8 if A else 4):
            pre = [f"s_add_u32 m0, s{S_MW}, {st*(32768 if A else 16384) + (i//4)*4096}"] if i % 4 == 0 else []
            L.append((pre, f"buffer_load_dwordx4 v{V_DW}, s[{SRD_W}:{SRD_W+3}], s{S_OW+i} offen offset:{1024*(i&3)} lds"))
        for i in range(1 if A else 5):
            pre = [f"s_add_u32 m0, s{S_MB}, {st*(4096 if A else 20480) + (i//4)*4096}"] if i % 4 == 0 else []
            L.append((pre, f"buffer_load_dwordx4 v{V_DB}, s[{SRD_B}:{SRD_B+3}], s{S_OB+i} offen offset:{1024*(i&3)} lds"))
        return L
    def advance(self):
        return [f"s_add_u32 s{SRD_X}, s{SRD_X}, 128", f"s_addc_u32 s{SRD_X+1}, s{SRD_X+1}, 0",
                f"s_add_u32 s{SRD_W}, s{SRD_W}, {64*7168}", f"s_addc_u32 s{SRD_W+1}, s{SRD_W+1}, 0",
                f"s_add_u32 s{SRD_B}, s{SRD_B}, 128", f"s_addc_u32 s{SRD_B+1}, s{SRD_B+1}, 0"]

    def body(self, a, st, first=False, dma=True, extra=None, endwait="vmcnt(0)", barrier=True):
        S = Stream(a)
        order = ([] if first else [17, 18, 19]) + list(range(17))
        mf = []; start = {}
        for pos, gi in enumerate(order):
            key = ("prev", gi) if (not first and pos < 3) else gi
            start[key] = len(mf)
            ms = self.group_mfmas(gi, first)
            if not first and pos < 3:
                ms = [(t, []) for t, _ in ms]
            mf += ms
        n = len(mf)
        fill = [[] for _ in range(n + 1)]
        def put(pos, item): fill[min(pos, n)].append(item)
        g = lambda gi: [("ds", t, ("g", gi)) for t in self.group_loads(gi, st)]
        x = lambda kk, jj: [("ds", self.x_load(kk, jj, st), ("x", kk, jj))]
        head = g(0) + x(0, 0) + x(0, 1) + x(0, 2) + x(0, 3) + g(1) + x(0, 4) + x(0, 5) + x(0, 6) + x(0, 7)
        if first:
            for it in head + g(2): put(0, it)
            for it in g(3): put(2, it)
            for it in g(4): put(4, it)
        else:
            for k, it in enumerate(head): put(k + 1, it)
            for k, it in enumerate(g(2)): put(11 + k, it)
            for k, it in enumerate(g(3)): put(17 + k, it)
            for k, it in enumerate(g(4)): put(25 + k, it)
        for gi in range(5, 20):
            for k, it in enumerate(g(gi)): put(start[gi-4] + 1 + k, it)
        for jj in range(8):
            put(start[1 + jj] + 4, x(1, jj)[0])
        if dma:
            L = self.dma_list(st ^ 1)
            p0 = self.opt.get("dma0", 14); dp = self.opt.get("dmastep", 6)
            adv = self.advance()
            for k, t in enumerate(adv): put(2 + 2*k, ("s", t))
            for k, (pre, ld) in enumerate(L):
                pos = p0 + int(k*dp)
                for t in pre: put(pos - 1, ("s", t))
                put(pos, ("s", ld))
        if extra:
            for pos, t in extra: put(pos, ("s", t))
        for i in range(n + 1):
            for it in fill[i]:
                if it[0] == "ds": S.ds(it[1], it[2])
                else: a(it[1])
            if i < n:
                S.need(mf[i][1])
                a(mf[i][0])
        a(f"s_waitcnt {endwait} lgkmcnt(0)")
        if barrier: a("s_barrier")

    def tail(self, a):
        for gi in (17, 18, 19):
            for t, _ in self.group_mfmas(gi, False): a(t)

LOG2E = 1.4426950408889634
def split_const(c):
    hi = struct.unpack("<f", struct.pack("<f", c))[0]
    return hi, c - hi

def emit_exp(a, dst, src, t0, t1):
    hi, lo = split_const(LOG2E)
    a(f"s_mov_b32 s{S_T0}, {hex(f2u(hi))}")
    a(f"s_mov_b32 s{S_T1}, {hex(f2u(lo))}")
    a(f"v_mul_f32 v{t0}, s{S_T0}, v{src}")
    a(f"v_fma_f32 v{t1}, v{src}, s{S_T0}, -v{t0}")
    a(f"v_fma_f32 v{t1}, v{src}, s{S_T1}, v{t1}")
    a(f"v_exp_f32 v{t0}, v{t0}")
    a(f"v_mul_f32 v{t1}, {hex(f2u(math.log(2.0)))}, v{t1}")
    a(f"v_fma_f32 v{dst}, v{t0}, v{t1}, v{t0}")

def emit_csq(a, dr, di, sr, si, t):
    a(f"v_mul_f32 v{t}, v{si}, v{si}")
    a(f"v_mul_f32 v{di}, v{sr}, v{si}")
    a(f"v_fma_f32 v{dr}, v{sr}, v{sr}, -v{t}")
    a(f"v_add_f32 v{di}, v{di}, v{di}")

def stamp(a, opt, idx):
    if not opt.get("stamps"): return
    a(f"s_memtime s[{S_ST}:{S_ST+1}]")
    a("s_waitcnt lgkmcnt(0)")
    a(f"v_mov_b32 v{V_TMP+34}, s{S_ST}")
    a(f"v_writelane_b32 v{V_TMP+35}, s{S_ST}, {idx}")

def stamp_rt(a, opt, idx):
    if not opt.get("stamps"): return
    a(f"s_memrealtime s[{S_ST}:{S_ST+1}]")
    a("s_waitcnt lgkmcnt(0)")
    a(f"v_writelane_b32 v{V_TMP+35}, s{S_ST}, {idx}")

def stamp_flush(a, opt, kernel_idx):
    if not opt.get("stamps"): return
    a(f"s_add_u32 s{SRD_T}, s{ptr(P_WS)}, {WS_STAMP + kernel_idx*0x40000}")
    a(f"s_addc_u32 s{SRD_T+1}, s{ptr(P_WS)+1}, 0")
    a(f"s_mov_b32 s{SRD_T+2}, 0x40000")
    a(f"s_lshl_b32 s{S_T0}, s2, 2")
    a(f"s_add_u32 s{S_T0}, s{S_T0}, s{S_W}")
    a(f"s_lshl_b32 s{S_T0}, s{S_T0}, 6")
    a(f"v_lshrrev_b32 v{V_TMP+34}, 2, v{V_LANE16}")
    a("s_mov_b64 exec, 0xffff")
    a(f"buffer_store_dword v{V_TMP+35}, v{V_TMP+34}, s[{SRD_T}:{SRD_T+3}], s{S_T0} offen")
    a("s_mov_b64 exec, -1")

def p1_common_prologue(a, opt):
    a(f"""
    s_cmp_ge_u32 s2, 256
    s_cbranch_scc1 L1_done
    {"s_memtime s[98:99]" if opt.get("stamps") else ""}
    s_load_dwordx16 s[{S_PTR}:{S_PTR+15}], s[0:1], 0
    s_load_dwordx16 s[{S_PTR+16}:{S_PTR+31}], s[0:1], 64
    s_load_dwordx2 s[{S_PTR+32}:{S_PTR+33}], s[0:1], 128
    v_lshrrev_b32 v20, 6, v0
    v_and_b32 v21, 63, v0              ; lane
    v_readfirstlane_b32 s{S_W}, v20
    v_lshlrev_b32 v{V_LANE16}, 4, v21
    s_and_b32 s{S_XCD}, s2, 7
    s_lshr_b32 s{S_T0}, s2, 3
    s_and_b32 s{S_M}, s{S_T0}, 7
    s_lshr_b32 s{S_C}, s{S_T0}, 3
    s_lshl_b32 s{S_N}, s{S_XCD}, 2
    s_add_u32 s{S_N}, s{S_N}, s{S_C}
    s_lshr_b32 s{S_RH}, s{S_W}, 1
    s_and_b32 s{S_CC}, s{S_W}, 1
    """)
    for i in range(8):
        a(f"s_mov_b32 s{S_OX+i}, {(32*(i&1) + 4*(i>>1))*2048 + 3072 - 1024*(i&3)}")
        a(f"s_mov_b32 s{S_OW+i}, {(16*(i>>1) + 4*(i&1))*7168 + 3072 - 1024*(i&3)}")
    for i in range(5):
        a(f"s_mov_b32 s{S_OB+i}, {i*16*2048 + 3072 - 1024*(i&3)}")
    for s in (SRD_X, SRD_W, SRD_B, SRD_T):
        a(f"s_mov_b32 s{s+3}, 0x20000")
    a(f"s_mov_b32 s{SRD_X+2}, {64*2048 + 3072}")
    a(f"s_mov_b32 s{SRD_W+2}, {64*7168 + 3072}")
    a(f"s_mov_b32 s{SRD_B+2}, {80*2048 + 3072}")
    a(f"""
    v_lshrrev_b32 v22, 3, v21          ; u = lane>>3
    v_and_b32 v23, 7, v21              ; lane&7
    v_lshrrev_b32 v24, 4, v21          ; q = lane>>4
    v_xor_b32 v25, v23, v24
    v_lshlrev_b32 v25, 4, v25
    v_lshrrev_b32 v26, 5, v21
    v_lshlrev_b32 v26, 4, v26
    v_and_b32 v27, 3, v22
    v_add_u32 v26, v26, v27
    v_lshl_add_u32 v{V_DX0}, v26, 11, v25
    v_xor_b32 v{V_DX1}, 64, v{V_DX0}
    v_and_b32 v27, 1, v22
    v_lshl_add_u32 v27, v27, 3, v24    ; (u>>1) == lane>>4
    v_mul_u32_u24 v27, 7168, v27
    v_lshrrev_b32 v28, 1, v23
    v_xor_b32 v28, v28, v24
    v_lshlrev_b32 v28, 5, v28
    v_and_b32 v29, 1, v21
    v_lshl_add_u32 v28, v29, 4, v28
    v_add_u32 v{V_DW}, v27, v28
    s_lshl_b32 s{S_T0}, s{S_CC}, 14
    s_lshl_b32 s{S_T1}, s{S_CC}, 6
    v_lshl_add_u32 v27, v22, 11, v25
    v_xor_b32 v27, s{S_T1}, v27
    v_add_u32 v{V_DB}, s{S_T0}, v27
    v_and_b32 v30, 15, v21
    v_lshrrev_b32 v31, 1, v30          ; (rho>>1)&7
    v_xor_b32 v31, v31, v24
    v_lshlrev_b32 v31, 4, v31
    v_lshl_add_u32 v32, v30, 7, v31
    s_lshl_b32 s{S_T0}, s{S_RH}, 14
    s_lshl_b32 s{S_T1}, s{S_CC}, 13
    s_add_u32 s{S_T2}, s{S_T0}, s{S_T1}
    s_xor_b32 s{S_T3}, s{S_T2}, 8192         ; hf=1
    v_add_u32 v{V_AX+0}, s{S_T2}, v32
    v_add_u32 v{V_AX+1}, s{S_T3}, v32
    v_xor_b32 v{V_AX+2}, 64, v{V_AX+0}
    v_xor_b32 v{V_AX+3}, 64, v{V_AX+1}
    v_bfe_u32 v33, v21, 2, 2           ; r
    v_lshrrev_b32 v34, 5, v21          ; q>>1
    v_lshlrev_b32 v34, 4, v34
    v_lshl_add_u32 v34, v33, 1, v34
    v_and_b32 v35, 1, v24
    v_add_u32 v34, v34, v35
    v_lshlrev_b32 v34, 7, v34
    v_and_b32 v35, 3, v21
    v_lshl_add_u32 v34, v35, 3, v34
    s_lshl_b32 s{S_MX}, s{S_W}, 13
    s_waitcnt lgkmcnt(0)
    """)
    stamp(a, opt, 0); stamp_rt(a, opt, 14)
    if opt.get("stamps"): a(f"v_writelane_b32 v{V_TMP+35}, s98, 12")
    a(f"""
    s_lshl_b32 s{S_T0}, s{S_M}, 2
    s_add_u32 s{S_T0}, s{S_T0}, s{S_W}
    s_lshl_b32 s{S_T0}, s{S_T0}, 17          ; (m*256 + 64w)*2048
    s_add_u32 s{SRD_X}, s{ptr(P_X)}, s{S_T0}
    s_addc_u32 s{SRD_X+1}, s{ptr(P_X)+1}, 0
    s_sub_u32 s{SRD_X}, s{SRD_X}, 3072
    s_subb_u32 s{SRD_X+1}, s{SRD_X+1}, 0
    s_cmp_eq_u32 s{S_RH}, 0
    s_cselect_b32 s{SRD_W}, s{ptr(P_WG)}, s{ptr(P_WU)}
    s_cselect_b32 s{SRD_W+1}, s{ptr(P_WG)+1}, s{ptr(P_WU)+1}
    s_cselect_b32 s{SRD_B}, s{ptr(P_BRE)}, s{ptr(P_BIM)}
    s_cselect_b32 s{SRD_B+1}, s{ptr(P_BRE)+1}, s{ptr(P_BIM)+1}
    ; p0 = xcd*128 + c*16
    s_lshl_b32 s{S_T0}, s{S_XCD}, 7
    s_lshl_b32 s{S_T1}, s{S_C}, 4
    s_add_u32 s{S_T0}, s{S_T0}, s{S_T1}
    s_lshl_b32 s{S_T1}, s{S_T0}, 11
    s_add_u32 s{SRD_B}, s{SRD_B}, s{S_T1}
    s_addc_u32 s{SRD_B+1}, s{SRD_B+1}, 0
    s_sub_u32 s{SRD_B}, s{SRD_B}, 3072
    s_subb_u32 s{SRD_B+1}, s{SRD_B+1}, 0
    ; f0*2 = xcd*896 + c*256
    s_mul_i32 s{S_T1}, s{S_XCD}, 896
    s_lshl_b32 s{S_T2}, s{S_C}, 8
    s_add_u32 s{S_T1}, s{S_T1}, s{S_T2}
    s_add_u32 s{SRD_W}, s{SRD_W}, s{S_T1}
    s_addc_u32 s{SRD_W+1}, s{SRD_W+1}, 0
    s_sub_u32 s{SRD_W}, s{SRD_W}, 3072
    s_subb_u32 s{SRD_W+1}, s{SRD_W+1}, 0
    ; small loads: params (v40..42), gate rows (v44..v59 x, v60..v67 w), epoch (v18)
    v_add_u32 v36, s{S_T0}, v0               ; p = p0 + tid
    v_min_u32 v36, 1023, v36
    v_lshlrev_b32 v36, 1, v36
    s_mov_b32 s{SRD_T+2}, 2048
    s_mov_b32 s{SRD_T}, s{ptr(P_LRE)}
    s_mov_b32 s{SRD_T+1}, s{ptr(P_LRE)+1}
    buffer_load_ushort v40, v36, s[{SRD_T}:{SRD_T+3}], 0 offen
    s_mov_b32 s{SRD_T}, s{ptr(P_LIM)}
    s_mov_b32 s{SRD_T+1}, s{ptr(P_LIM)+1}
    buffer_load_ushort v41, v36, s[{SRD_T}:{SRD_T+3}], 0 offen
    s_mov_b32 s{SRD_T}, s{ptr(P_LDT)}
    s_mov_b32 s{SRD_T+1}, s{ptr(P_LDT)+1}
    buffer_load_ushort v42, v36, s[{SRD_T}:{SRD_T+3}], 0 offen
    s_mov_b32 s{SRD_T}, s{ptr(P_GW)}
    s_mov_b32 s{SRD_T+1}, s{ptr(P_GW)+1}
    buffer_load_dwordx4 v[60:63], v{V_LANE16}, s[{SRD_T}:{SRD_T+3}], 0 offen
    buffer_load_dwordx4 v[64:67], v{V_LANE16}, s[{SRD_T}:{SRD_T+3}], 0 offen offset:1024
    s_lshl_b32 s{S_T1}, s{S_M}, 8
    s_lshl_b32 s{S_T2}, s{S_N}, 3
    s_add_u32 s{S_T1}, s{S_T1}, s{S_T2}
    s_lshl_b32 s{S_T2}, s{S_W}, 1
    s_add_u32 s{S_CNT}, s{S_T1}, s{S_T2}
    s_lshl_b32 s{S_T1}, s{S_CNT}, 11
    s_add_u32 s{SRD_T}, s{ptr(P_X)}, s{S_T1}
    s_addc_u32 s{SRD_T+1}, s{ptr(P_X)+1}, 0
    s_mov_b32 s{SRD_T+2}, 4096
    buffer_load_dwordx4 v[124:127], v{V_LANE16}, s[{SRD_T}:{SRD_T+3}], 0 offen
    buffer_load_dwordx4 v[128:131], v{V_LANE16}, s[{SRD_T}:{SRD_T+3}], 0 offen offset:1024
    buffer_load_dwordx4 v[132:135], v{V_LANE16}, s[{SRD_T}:{SRD_T+3}], 0 offen offset:2048
    buffer_load_dwordx4 v[136:139], v{V_LANE16}, s[{SRD_T}:{SRD_T+3}], 0 offen offset:3072
    s_add_u32 s{SRD_T}, s{ptr(P_WS)}, {WS_EPOCH}
    s_addc_u32 s{SRD_T+1}, s{ptr(P_WS)+1}, 0
    s_lshl_b32 s{S_T1}, s{S_N}, 7
    v_mov_b32 v37, 0
    buffer_load_dword v{V_EPO}, v37, s[{SRD_T}:{SRD_T+3}], s{S_T1} offen sc1
    """)
    stamp(a, opt, 8)
    a(f"s_cmp_eq_u32 s{S_C}, 3")
    a("s_cbranch_scc1 L1_B")

def p1_gate_params(a, typ, opt):
    T = 68
    for d in range(8):
        a(f"v_lshlrev_b32 v{T+2*d}, 16, v{60+d}")
        a(f"v_and_b32 v{T+2*d+1}, 0xffff0000, v{60+d}")
    for row in range(2):
        X = 124 + 8*row; U = 84 + 16*row
        for d in range(8):
            a(f"v_lshlrev_b32 v{U+2*d}, 16, v{X+d}")
            a(f"v_and_b32 v{U+2*d+1}, 0xffff0000, v{X+d}")
        for d in range(8):
            a(f"v_pk_mul_f32 v[{U+2*d}:{U+2*d+1}], v[{U+2*d}:{U+2*d+1}], v[{T+2*d}:{T+2*d+1}]")
        for d in range(8):
            a(f"v_cvt_pk_bf16_f32 v{X+d}, v{U+2*d}, v{U+2*d+1}")
        for d in range(8):
            a(f"v_lshlrev_b32 v{U+2*d}, 16, v{X+d}")
            a(f"v_and_b32 v{U+2*d+1}, 0xffff0000, v{X+d}")
        for step in (8, 4, 2):
            for d in range(0, step, 2):
                a(f"v_pk_add_f32 v[{U+d}:{U+d+1}], v[{U+d}:{U+d+1}], v[{U+step+d}:{U+step+d+1}]")
        a(f"v_add_f32 v{38+row}, v{U}, v{U+1}")
    for dpp in ("row_shr:1", "row_shr:2", "row_shr:4", "row_shr:8"):
        a("s_nop 1")
        a(f"v_add_f32_dpp v38, v38, v38 {dpp} row_mask:0xf bank_mask:0xf bound_ctrl:1")
        a(f"v_add_f32_dpp v39, v39, v39 {dpp} row_mask:0xf bank_mask:0xf bound_ctrl:1")
    a("s_nop 1")
    a("v_add_f32_dpp v38, v38, v38 row_bcast:15 row_mask:0xa bank_mask:0xf")
    a("v_add_f32_dpp v39, v39, v39 row_bcast:15 row_mask:0xa bank_mask:0xf")
    a("s_nop 1")
    a("v_add_f32_dpp v38, v38, v38 row_bcast:31 row_mask:0xc bank_mask:0xf")
    a("v_add_f32_dpp v39, v39, v39 row_bcast:31 row_mask:0xc bank_mask:0xf")
    a("s_nop 0")
    a(f"v_readlane_b32 s{S_T2}, v38, 63")
    a(f"v_readlane_b32 s{S_T3}, v39, 63")
    a("s_nop 1")
    a(f"v_mov_b32 v38, s{S_T2}")
    a(f"v_writelane_b32 v38, s{S_T3}, 1")
    a("v_cvt_pk_bf16_f32 v38, v38, v38")
    a("v_and_b32 v38, 0xffff0000, v38")
    a("v_sub_f32 v39, 0, v38")
    a(f"v_min_f32 v39, {hex(f2u(88.0))}, v39")
    a(f"v_max_f32 v39, {hex(f2u(-120.0))}, v39")
    emit_exp(a, 39, 39, 44, 45)
    a("v_add_f32 v39, 1.0, v39")
    a("v_rcp_f32 v44, v39")
    a("s_nop 0")
    a("v_fma_f32 v45, -v39, v44, 1.0")
    a("v_fma_f32 v44, v44, v45, v44")
    a("v_cvt_pk_bf16_f32 v38, v44, v44")
    a("v_and_b32 v38, 0xffff0000, v38")
    a("v_lshlrev_b32 v40, 16, v40")
    a("v_lshlrev_b32 v41, 16, v41")
    a("v_lshlrev_b32 v42, 16, v42")
    emit_exp(a, 43, 42, 44, 45)
    a("v_cvt_pk_bf16_f32 v43, v43, v43")
    a("v_and_b32 v43, 0xffff0000, v43")
    a("v_mul_f32 v46, v43, v40")
    a("v_mul_f32 v47, v43, v41")
    emit_exp(a, 46, 46, 44, 45)
    hi, lo = split_const(1.0/(2*math.pi))
    a(f"s_mov_b32 s{S_T0}, {hex(f2u(hi))}")
    a(f"s_mov_b32 s{S_T1}, {hex(f2u(lo))}")
    a(f"v_mul_f32 v44, s{S_T0}, v47")
    a(f"v_fma_f32 v45, v47, s{S_T0}, -v44")
    a(f"v_fma_f32 v45, v47, s{S_T1}, v45")
    a("v_rndne_f32 v48, v44")
    a("v_sub_f32 v44, v44, v48")
    a("v_add_f32 v44, v44, v45")
    a("v_cos_f32 v48, v44")
    a("v_sin_f32 v49, v44")
    a("s_nop 0")
    a("v_mul_f32 v116, v46, v48")
    a("v_mul_f32 v117, v46, v49")
    a("v_add_f32 v44, -1.0, v116")
    a("v_mul_f32 v45, v40, v40")
    a("v_fma_f32 v45, v41, v41, v45")
    a("v_rcp_f32 v48, v45")
    a("v_mul_f32 v118, v44, v40")
    a("v_fma_f32 v49, -v45, v48, 1.0")
    a("v_fma_f32 v48, v48, v49, v48")
    a("v_fma_f32 v118, v117, v41, v118")
    a("v_mul_f32 v119, v117, v40")
    a("v_fma_f32 v119, -v44, v41, v119")
    a("v_mul_f32 v118, v118, v48")
    a("v_mul_f32 v119, v119, v48")
    emit_csq(a, 120, 121, 116, 117, 44)
    for _ in range(3): emit_csq(a, 120, 121, 120, 121, 44)
    emit_csq(a, 122, 123, 120, 121, 44)
    for _ in range(3): emit_csq(a, 122, 123, 122, 123, 44)
    NP = 16 if typ == "A" else 80
    a(f"v_lshlrev_b32 v44, 5, v0")
    a(f"v_add_u32 v44, {LDS_PT}, v44")
    a(f"v_cmp_gt_u32 vcc, {NP}, v0")
    a(f"s_and_saveexec_b64 s[{S_T0+1}:{S_T0+2}], vcc" if (S_T0+1) % 2 == 0 else "ERR")
    a(f"s_cbranch_execz L1{typ}_nop")
    a("ds_write_b128 v44, v[116:119]")
    a("ds_write_b128 v44, v[120:123] offset:16")
    a(f"L1{typ}_nop:")
    a("s_mov_b64 exec, -1")

GELU_C0 = -2.0*math.sqrt(2.0/math.pi)*LOG2E
GELU_C1 = GELU_C0*0.044715

def p1_type(a, typ, opt):
    P = P1(typ, opt)
    A = typ == "A"
    L = f"L1{typ}"
    if A:
        a(f"""
    s_lshl_b32 s{S_T0}, s{S_CC}, 7
    s_add_u32 s{SRD_W}, s{SRD_W}, s{S_T0}
    s_addc_u32 s{SRD_W+1}, s{SRD_W+1}, 0
    s_lshl_b32 s{S_MW}, s{S_W}, 13
    s_add_u32 s{S_MW}, s{S_MW}, 65536
    s_lshl_b32 s{S_MB}, s{S_W}, 10
    s_add_u32 s{S_MB}, s{S_MB}, 131072
    """)
    else:
        a(f"""
    s_mul_i32 s{S_T0}, s{S_CC}, {32*7168}
    s_add_u32 s{SRD_W}, s{SRD_W}, s{S_T0}
    s_addc_u32 s{SRD_W+1}, s{SRD_W+1}, 0
    s_lshl_b32 s{S_MW}, s{S_W}, 12
    s_add_u32 s{S_MW}, s{S_MW}, 65536
    s_mul_i32 s{S_MB}, s{S_W}, 5120
    s_add_u32 s{S_MB}, s{S_MB}, 98304
    """)
    for st in (0, 1):
        for pre, ld in P.dma_list(st):
            for t in pre:
                a(t); a("s_nop 0")
            a(ld)
        if st == 0:
            for t in P.advance(): a(t)
    if A:
        a(f"s_lshl_b32 s{S_T0}, s{S_CC}, 13")
        a(f"s_add_u32 s{S_T0}, s{S_T0}, 65536")
        for f in range(4):
            a(f"v_xor_b32 v35, {f}, v33")
            a(f"v_lshl_add_u32 v35, v35, 5, v34")
            a(f"v_add_u32 v{V_AW+f}, s{S_T0}, v35")
        a(f"v_add_u32 v{V_AB}, 131072, v32")
        a(f"v_xor_b32 v{V_AB+1}, 64, v{V_AB}")
    else:
        a(f"s_lshl_b32 s{S_T0}, s{S_CC}, 1")
        for f in range(2):
            a(f"v_xor_b32 v35, s{S_T0}, v33")
            if f: a(f"v_xor_b32 v35, 1, v35")
            a(f"v_lshl_add_u32 v35, v35, 5, v34")
            a(f"v_add_u32 v{V_AW+f}, 65536, v35")
        a(f"v_lshrrev_b32 v35, 3, v30")
        a(f"v_mul_u32_u24 v35, 5120, v35")
        a(f"v_and_b32 v36, 7, v30")
        a(f"v_lshl_add_u32 v35, v36, 7, v35")
        a(f"v_add_u32 v35, v35, v31")
        a(f"v_add_u32 v{V_AB}, 98304, v35")
        a(f"v_xor_b32 v{V_AB+1}, 64, v{V_AB}")
        a(f"s_lshl_b32 s{S_T0}, s{S_CC}, 11")
        a(f"v_add_u32 v{V_AB+2}, s{S_T0}, v{V_AB}")
        a(f"v_add_u32 v{V_AB+3}, s{S_T0}, v{V_AB+1}")
    stamp(a, opt, 9)
    a("s_waitcnt vmcnt(34)")
    stamp(a, opt, 10)
    p1_gate_params(a, typ, opt)
    stamp(a, opt, 11)
    a(f"v_add_u32 v{V_EPO}, 1, v{V_EPO}")
    a(f"v_or_b32 v{V_EPO}, 0x80000000, v{V_EPO}")
    a(f"v_mov_b32 v{V_EPO+1}, 0")
    a(f"v_readfirstlane_b32 s{S_NONCE}, v{V_EPO}")
    a(f"v_lshrrev_b32 v39, 2, v{V_LANE16}")
    a("s_waitcnt vmcnt(17) lgkmcnt(0)")
    a("s_barrier")
    stamp(a, opt, 1)
    a(f"""
    s_add_u32 s{SRD_T}, s{ptr(P_WS)}, {WS_GATE}
    s_addc_u32 s{SRD_T+1}, s{ptr(P_WS)+1}, 0
    s_mov_b32 s{SRD_T+2}, 8192
    s_lshl_b32 s{S_T0}, s{S_CNT}, 2
    s_mov_b64 exec, 3
    buffer_store_dword v38, v39, s[{SRD_T}:{SRD_T+3}], s{S_T0} offen
    s_cmp_eq_u32 s{S_W}, 0
    s_cbranch_scc1 {L}_atom
    buffer_store_dword v38, v39, s[{SRD_T}:{SRD_T+3}], s{S_T0} offen
    s_branch {L}_atomd
{L}_atom:
    s_mov_b64 exec, 1
    s_mov_b32 s{SRD_T}, s{ptr(P_DBG)}
    s_mov_b32 s{SRD_T+1}, s{ptr(P_DBG)+1}
    s_mov_b32 s{SRD_T+2}, 256
    s_lshl_b32 s{S_T0}, s{S_N}, 3
    buffer_atomic_cmpswap v[{V_EPO}:{V_EPO+1}], v39, s[{SRD_T}:{SRD_T+3}], s{S_T0} offen sc0 sc1
{L}_atomd:
    s_mov_b64 exec, -1
    """)
    P.body(a, 0, first=True, dma=False, endwait="vmcnt(2)")
    a(f"s_mov_b32 s{S_CNT}, 7")
    a(".p2align 3")
    a(f"{L}_loop:")
    P.body(a, 1)
    loopctl = [(100, f"s_sub_u32 s{S_CNT}, s{S_CNT}, 1")]
    P.body(a, 0, extra=loopctl)
    a(f"s_cmp_lg_u32 s{S_CNT}, 0")
    a(f"s_cbranch_scc1 {L}_loop")
    P.body(a, 1, dma=False, barrier=False, endwait="vmcnt(0)")
    P.tail(a)
    stamp(a, opt, 2)
    p1_epilogue(a, P, opt)

def p1_epilogue(a, P, opt):
    typ = P.typ; A = typ == "A"; L = f"L1{typ}"
    T = V_TMP
    units = [("H", 0 if A else 4, 0)] + ([] if A else [("S", 0, 0), ("S", 0, 4), ("S", 1, 0), ("S", 1, 4)])
    nu = len(units)
    VP = T
    VU0 = T + 12
    VH = T + 20
    VA = T + 30
    a(f"v_lshrrev_b32 v{VA}, 4, v{V_LANE16}")
    a(f"v_and_b32 v{VA+1}, 15, v{VA}")
    a(f"v_lshlrev_b32 v{VA+2}, 5, v{VA+1}")
    a(f"v_add_u32 v{VA+2}, {LDS_PT}, v{VA+2}")
    pblk = {}
    if A:
        a(f"ds_read_b128 v[{VP}:{VP+3}], v{VA+2}")
        pblk = {0: VP}
    else:
        a(f"ds_read_b128 v[{VP}:{VP+3}], v{VA+2} offset:{4*512}")
        a(f"s_lshl_b32 s{S_T0}, s{S_CC}, 10")
        a(f"v_add_u32 v{VA+2}, s{S_T0}, v{VA+2}")
        a(f"ds_read_b128 v[{VP+4}:{VP+7}], v{VA+2}")
        a(f"ds_read_b128 v[{VP+8}:{VP+11}], v{VA+2} offset:512")
        pblk = {0: VP, 1: VP+4, 2: VP+4, 3: VP+8, 4: VP+8}
    a(f"""
    s_cmp_eq_u32 s{S_W}, 0
    s_cbranch_scc0 {L}_nn
    v_readfirstlane_b32 s{S_T0}, v{V_EPO}
    s_cmp_eq_u32 s{S_T0}, 0
    s_cselect_b32 s{S_NONCE}, s{S_NONCE}, s{S_T0}
    v_mov_b32 v{V_EPO}, s{S_NONCE}
    v_mov_b32 v{V_EPO+1}, {LDS_NONCE}
    ds_write_b32 v{V_EPO+1}, v{V_EPO}
    s_cbranch_scc0 {L}_nn
    s_add_u32 s{SRD_T}, s{ptr(P_WS)}, {WS_EPOCH}
    s_addc_u32 s{SRD_T+1}, s{ptr(P_WS)+1}, 0
    s_mov_b32 s{SRD_T+2}, 4096
    s_lshl_b32 s{S_T1}, s{S_N}, 7
    v_mov_b32 v{V_EPO+1}, 0
    s_mov_b64 exec, 1
    buffer_store_dword v{V_EPO}, v{V_EPO+1}, s[{SRD_T}:{SRD_T+3}], s{S_T1} offen
    s_mov_b64 exec, -1
{L}_nn:
    """)
    a(f"v_lshrrev_b32 v{VA}, 4, v{VA}")
    a(f"v_lshlrev_b32 v{VA}, 7, v{VA}")
    a(f"v_lshl_add_u32 v{VA}, v{VA+1}, 3, v{VA}")
    a(f"s_lshl_b32 s{S_T0}, s{S_RH}, 10")
    a(f"s_lshl_b32 s{S_T1}, s{S_CC}, 9")
    a(f"s_add_u32 s{S_T0}, s{S_T0}, s{S_T1}")
    a(f"s_add_u32 s{S_T0}, s{S_T0}, {LDS_F}")
    a(f"s_xor_b32 s{S_T1}, s{S_T0}, 512")
    assert LDS_F % 1024 == 0
    a(f"s_lshl_b32 s{S_T2}, s{S_CC}, 12")
    a(f"v_add_u32 v{VA+1}, s{S_T0}, v{VA}")
    a(f"s_add_u32 s{S_T0}, s{S_T0}, s{S_T2}")
    a(f"s_add_u32 s{S_T1}, s{S_T1}, s{S_T2}")
    a(f"v_add_u32 v{VA+2}, s{S_T0}, v{VA}")
    a(f"v_add_u32 v{VA+3}, s{S_T1}, v{VA}")
    def faddr(ui):
        kind, idx, jj0 = units[ui]
        if kind == "H": return VA+1, idx*2048
        return (VA+2 if jj0 == 0 else VA+3), idx*2048
    a("s_waitcnt lgkmcnt(0)")
    a("s_nop 4")
    ublk = {}
    free = VU0
    for ui, (kind, idx, jj0) in enumerate(units):
        pp = pblk[ui]
        for b in range(4):
            R = P.tile[(kind, idx, 0, jj0 + b)][1]
            for r in range(4):
                a(f"v_pk_mul_f32 v[{free+2*r}:{free+2*r+1}], v[{pp+2}:{pp+3}], v[{R+(r&2)}:{R+(r&2)+1}] op_sel:[0,{r&1}] op_sel_hi:[1,{r&1}]")
            for r in range(4):
                a(f"v_pk_fma_f32 v[{free+2*r}:{free+2*r+1}], v[{pp+2}:{pp+3}], v[{R+4+(r&2)}:{R+4+(r&2)+1}], v[{free+2*r}:{free+2*r+1}] op_sel:[1,{r&1},0] op_sel_hi:[0,{r&1},1] neg_lo:[1,0,0]")
            ublk[(ui, b)] = free
            free = R
    SP = free
    def ureg(ui, s): return ublk[(ui, s >> 2)] + 2*(s & 3)
    def step(dst, h, u, pp, tmp):
        a(f"v_pk_fma_f32 v[{tmp}:{tmp+1}], v[{pp}:{pp+1}], v[{h}:{h+1}], v[{u}:{u+1}] op_sel:[1,1,0] op_sel_hi:[1,0,1] neg_lo:[1,0,0]")
        return f"v_pk_fma_f32 v[{dst}:{dst+1}], v[{pp}:{pp+1}], v[{h}:{h+1}], v[{tmp}:{tmp+1}] op_sel:[0,0,0] op_sel_hi:[0,1,1]"
    tmps = [SP, SP+2, SP+4, SP+6, V_EPO]
    for s in range(1, 16):
        second = []
        for ui in range(nu):
            h = ureg(ui, 0) if s == 1 else VH + 2*ui
            second.append(step(VH + 2*ui, h, ureg(ui, s), pblk[ui], tmps[ui]))
        for t in second: a(t)
    for ui in range(nu):
        va, off = faddr(ui)
        a(f"ds_write_b64 v{va}, v[{VH+2*ui}:{VH+2*ui+1}] offset:{off}")
    a("s_waitcnt lgkmcnt(0)")
    a("s_barrier")
    stamp(a, opt, 3)
    nscan = 1 if A else 2
    VS = VH
    a(f"v_mov_b32 v{V_EPO+1}, {LDS_NONCE}")
    a(f"ds_read_b32 v{V_EPO}, v{V_EPO+1}")
    a(f"s_cmp_lt_u32 s{S_W}, {nscan}")
    a(f"s_cbranch_scc0 {L}_e2d")
    a(f"v_lshrrev_b32 v{VS+8}, 4, v{V_LANE16}")
    if A:
        a(f"v_and_b32 v{VS+8}, 15, v{VS+8}")
    else:
        a(f"s_lshl_b32 s{S_T0}, s{S_W}, 6")
        a(f"v_add_u32 v{VS+8}, s{S_T0}, v{VS+8}")
        a(f"v_min_u32 v{VS+8}, 79, v{VS+8}")
    a(f"v_lshlrev_b32 v{VS+9}, 5, v{VS+8}")
    a(f"v_add_u32 v{VS+9}, {LDS_PT}, v{VS+9}")
    a(f"ds_read_b128 v[{VS}:{VS+3}], v{VS+9} offset:16")
    a(f"v_lshrrev_b32 v{VS+6}, 4, v{VS+8}")
    a(f"v_lshlrev_b32 v{VS+6}, 11, v{VS+6}")
    a(f"v_and_b32 v{VS+9}, 15, v{VS+8}")
    a(f"v_lshl_add_u32 v{VS+6}, v{VS+9}, 3, v{VS+6}")
    a(f"v_add_u32 v{VS+6}, {LDS_F}, v{VS+6}")
    a(f"s_lshl_b32 s{S_T0}, s{S_XCD}, 7")
    a(f"s_lshl_b32 s{S_T1}, s{S_C}, 4")
    a(f"s_add_u32 s{S_T0}, s{S_T0}, s{S_T1}")
    a(f"v_add_u32 v{VS+7}, s{S_T0}, v{VS+8}")
    a(f"v_lshlrev_b32 v{VS+7}, 4, v{VS+7}")
    def horner(write):
        for s0 in range(0, 16, 4):
            for k in range(4):
                a(f"ds_read_b64 v[{SP+2*k}:{SP+2*k+1}], v{VS+6} offset:{(s0+k)*128}")
            for k in range(4):
                a(f"s_waitcnt lgkmcnt({3-k + (k if write else 0)})")
                if write:
                    a(f"ds_write_b64 v{VS+6}, v[{VS+4}:{VS+5}] offset:{(s0+k)*128}")
                t = step(VS+4, VS+4, SP+2*k, VS, VS+8)
                a(t)
    a(f"v_mov_b32 v{VS+4}, 0")
    a(f"v_mov_b32 v{VS+5}, 0")
    horner(False)
    a(f"""
    s_add_u32 s{SRD_T}, s{ptr(P_WS)}, {WS_GRAN}
    s_addc_u32 s{SRD_T+1}, s{ptr(P_WS)+1}, 0
    s_mov_b32 s{SRD_T+2}, {8*16384}
    s_lshl_b32 s{S_T0}, s{S_M}, 14
    v_mov_b32 v{SP}, v{VS+4}
    v_mov_b32 v{SP+1}, v{V_EPO}
    v_mov_b32 v{SP+2}, v{VS+5}
    v_mov_b32 v{SP+3}, v{V_EPO}
    """)
    if A: a("s_mov_b64 exec, 0xffff")
    else:
        a(f"s_cmp_eq_u32 s{S_W}, 0")
        a("s_cselect_b64 exec, -1, 0xffff")
    a(f"buffer_store_dwordx4 v[{SP}:{SP+3}], v{VS+7}, s[{SRD_T}:{SRD_T+3}], s{S_T0} offen sc0 sc1")
    a("s_mov_b64 exec, -1")
    a(f"{L}_e2d:")
    a("s_waitcnt lgkmcnt(0)")
    a(f"v_readfirstlane_b32 s{S_NONCE}, v{V_EPO}")
    a(f"s_mov_b32 s{S_K0}, {hex(f2u(GELU_C1))}"); a(f"s_mov_b32 s{S_K0+1}, {hex(f2u(GELU_C1))}")
    a(f"s_mov_b32 s{S_K1}, 1.0"); a(f"s_mov_b32 s{S_K1+1}, 1.0")
    a(f"v_mov_b32 v{V_EPO}, {hex(f2u(GELU_C0))}"); a(f"v_mov_b32 v{V_EPO+1}, {hex(f2u(GELU_C0))}")
    a(f"""
    s_lshl_b32 s{S_T0}, s{S_M}, 1
    s_add_u32 s{S_T0}, s{S_T0}, s{S_RH}
    s_mul_i32 s{S_T0}, s{S_T0}, {8*NKB*1024}
    s_add_u32 s{SRD_X}, s{ptr(P_WS)}, s{S_T0}
    s_addc_u32 s{SRD_X+1}, s{ptr(P_WS)+1}, 0
    s_mov_b32 s{SRD_X+2}, {8*NKB*1024}
    s_mul_i32 s{S_HLO}, s{S_CC}, {4*NKB*1024}
    s_sub_u32 s{S_HHI}, {4*NKB*1024}, s{S_HLO}
    s_mul_i32 s{S_T0}, s{S_XCD}, 14
    s_lshl_b32 s{S_T1}, s{S_C}, 2
    s_add_u32 s{S_T0}, s{S_T0}, s{S_T1}
    s_lshl_b32 s{S_T1}, s{S_CC}, {1 if A else 0}
    s_add_u32 s{S_T0}, s{S_T0}, s{S_T1}
    s_lshl_b32 s{S_T0}, s{S_T0}, 10
    s_add_u32 s{S_T2}, s{S_HLO}, s{S_T0}
    s_add_u32 s{S_T3}, s{S_HHI}, s{S_T0}
    """)
    stflag = opt.get("hstore", "")
    TT = 2
    mimic = opt.get("mimic", False)
    freed = [10, 14]
    for jj in range(8):
        for i in range(2 if A else 1):
            tiles = [(P.tile[("G", f, 0, jj)], P.tile[("G", f, 1, jj)]) for f in (2*i, 2*i+1)]
            gp = []; up = []
            for n_, (g_, u_) in enumerate(tiles):
                for w_, (t_, lst) in enumerate(((g_, gp), (u_, up))):
                    if t_[0] == "a":
                        d = freed.pop() if freed else None
                        assert d is not None
                        for r in range(4): a(f"v_accvgpr_read_b32 v{d+r}, a{t_[1]+r}")
                        lst += [d, d+2]
                    else:
                        lst += [t_[1], t_[1]+2]
            if mimic:
                for lst in (gp, up):
                    for k in range(4): a(f"v_cvt_pk_bf16_f32 v{TT+k}, v{lst[k]}, v{lst[k]+1}")
                    for k in range(4):
                        a(f"v_lshlrev_b32 v{lst[k]}, 16, v{TT+k}")
                        a(f"v_and_b32 v{lst[k]+1}, 0xffff0000, v{TT+k}")
            pr = lambda x: f"v[{x}:{x+1}]"
            for k in range(4): a(f"v_pk_mul_f32 {pr(TT+2*k)}, {pr(gp[k])}, {pr(gp[k])}")
            for k in range(4): a(f"v_pk_fma_f32 {pr(TT+2*k)}, {pr(TT+2*k)}, s[{S_K0}:{S_K0+1}], {pr(V_EPO)}")
            for k in range(4): a(f"v_pk_mul_f32 {pr(TT+2*k)}, {pr(TT+2*k)}, {pr(gp[k])}")
            for k in range(8): a(f"v_exp_f32 v{TT+k}, v{TT+k}")
            if not mimic:
                for k in range(4): a(f"v_pk_mul_f32 {pr(gp[k])}, {pr(gp[k])}, {pr(up[k])}")
            else:
                a("s_nop 0")
            for k in range(4): a(f"v_pk_add_f32 {pr(TT+2*k)}, {pr(TT+2*k)}, s[{S_K1}:{S_K1+1}]")
            for k in range(8): a(f"v_rcp_f32 v{TT+k}, v{TT+k}")
            a(f"s_add_u32 s{S_T0}, s{S_T2 if jj < 4 else S_T3}, {((jj & 3)*NKB + i)*1024}")
            for k in range(4): a(f"v_pk_mul_f32 {pr(gp[k])}, {pr(gp[k])}, {pr(TT+2*k)}")
            if mimic:
                for k in range(4): a(f"v_cvt_pk_bf16_f32 v{TT+k}, v{gp[k]}, v{gp[k]+1}")
                for k in range(4):
                    a(f"v_lshlrev_b32 v{gp[k]}, 16, v{TT+k}")
                    a(f"v_and_b32 v{gp[k]+1}, 0xffff0000, v{TT+k}")
                for k in range(4): a(f"v_pk_mul_f32 {pr(gp[k])}, {pr(gp[k])}, {pr(up[k])}")
            O = up[0]
            for k in range(4): a(f"v_cvt_pk_bf16_f32 v{O+k}, v{gp[k]}, v{gp[k]+1}")
            a(f"buffer_store_dwordx4 v[{O}:{O+3}], v{V_LANE16}, s[{SRD_X}:{SRD_X+3}], s{S_T0} offen {stflag}")
            freed += [O, up[2], gp[2], gp[0]]
    stamp(a, opt, 4)
    G0 = sorted(set(freed))
    a(f"s_cmp_lt_u32 s{S_W}, {nscan}")
    a(f"s_cbranch_scc0 {L}_e4d")
    a(f"s_sub_u32 s{S_T0}, s{S_M}, 7")
    a(f"s_lshl_b32 s{S_T0}, s{S_T0}, 14")
    a(f"v_add_u32 v{VS+7}, s{S_T0}, v{VS+7}")
    a(f"s_mov_b32 s{S_CNT}, 0x40000")
    a(f"{L}_poll:")
    for j in range(7):
        d = G0[j]
        a(f"v_add_u32 v{TT+j}, {j*16384}, v{VS+7}")
        a(f"buffer_load_dwordx4 v[{d}:{d+3}], v{TT+j}, s[{SRD_T}:{SRD_T+3}], 0 offen sc0 sc1")
    a(f"s_mov_b64 s[{S_K0}:{S_K0+1}], -1")
    a("s_waitcnt vmcnt(0)")
    for j in range(7):
        d = G0[j]
        a(f"s_add_u32 s{S_T0}, s{S_M}, {j}")
        a(f"s_cmp_ge_u32 s{S_T0}, 7")
        a(f"s_cselect_b32 s{S_T0}, s{S_NONCE}, 0")
        a(f"v_cmp_eq_u32 vcc, s{S_T0}, v{d+1}")
        a(f"s_and_b64 s[{S_K0}:{S_K0+1}], s[{S_K0}:{S_K0+1}], vcc")
        a(f"v_cmp_eq_u32 vcc, s{S_T0}, v{d+3}")
        a(f"s_and_b64 s[{S_K0}:{S_K0+1}], s[{S_K0}:{S_K0+1}], vcc")
    a(f"s_sub_u32 s{S_CNT}, s{S_CNT}, 1")
    a(f"s_cbranch_scc1 {L}_polld")
    a(f"s_cmp_eq_u64 s[{S_K0}:{S_K0+1}], -1")
    a(f"s_cbranch_scc0 {L}_poll")
    a(f"{L}_polld:")
    a(f"v_mov_b32 v{VS+4}, 0")
    a(f"v_mov_b32 v{VS+5}, 0")
    for j in range(7):
        d = G0[j]
        a(f"v_mov_b32 v{d+1}, v{d+2}")
        t = step(VS+4, VS+4, d, VS+2, VS+8)
        a(t)
    horner(True)
    a(f"{L}_e4d:")
    a("s_waitcnt lgkmcnt(0)")
    a("s_barrier")
    stamp(a, opt, 5)
    for ui in range(nu):
        va, off = faddr(ui)
        a(f"ds_read_b64 v[{VH+2*ui}:{VH+2*ui+1}], v{va} offset:{off}")
    W_, R_ = TT, TT+1
    a(f"v_lshrrev_b32 v{TT+2}, 4, v{V_LANE16}")
    a(f"v_and_b32 v{TT+3}, 15, v{TT+2}")
    a(f"v_lshrrev_b32 v{TT+4}, 4, v{TT+2}")
    a(f"v_lshl_add_u32 v{W_}, v{TT+3}, 2, v{TT+4}")
    a(f"v_lshlrev_b32 v{W_}, 4, v{W_}")
    a(f"s_lshl_b32 s{S_T0}, s{S_W}, 15")
    a(f"v_add_u32 v{W_}, s{S_T0}, v{W_}")
    a(f"v_lshrrev_b32 v{TT+5}, 5, v{TT+2}")
    a(f"v_lshlrev_b32 v{TT+5}, 9, v{TT+5}")
    a(f"v_lshl_add_u32 v{TT+5}, v{TT+3}, 4, v{TT+5}")
    a(f"v_and_b32 v{TT+4}, 1, v{TT+4}")
    a(f"v_lshl_add_u32 v{R_}, v{TT+4}, 3, v{TT+5}")
    a(f"v_add_u32 v{R_}, s{S_T0}, v{R_}")
    a(f"s_lshl_b32 s{S_T0}, s{S_XCD}, 3")
    a(f"s_add_u32 s{S_T0}, s{S_T0}, s{S_C}")
    a(f"s_add_u32 s{S_T0}, s{S_T0}, 112")
    a(f"s_lshl_b32 s{S_T0}, s{S_T0}, 10")
    a(f"s_add_u32 s{S_T2}, s{S_HLO}, s{S_T0}")
    a(f"s_lshl_b32 s{S_T1}, s{S_CC}, 11")
    a(f"s_add_u32 s{S_T0}, s{S_T0}, s{S_T1}")
    a(f"s_add_u32 s{S_HLO}, s{S_HLO}, s{S_T0}")
    a(f"s_add_u32 s{S_HHI}, s{S_HHI}, s{S_T0}")
    a("s_waitcnt lgkmcnt(0)")
    tmps = [SP, SP+2, SP+4, SP+6, V_EPO]
    pool = G0[7:]
    for b in range(4):
        for r in range(4):
            s = 4*b + r
            second = []
            for ui in range(nu):
                h = VH + 2*ui if s == 0 else ureg(ui, s-1)
                second.append(step(ureg(ui, s), h, ureg(ui, s), pblk[ui], tmps[ui]))
            for t in second: a(t)
        for ui in range(nu):
            O = pool[(b*nu + ui) % len(pool)]
            U = ublk[(ui, b)]
            a(f"v_cvt_pk_bf16_f32 v{O}, v{U}, v{U+2}")
            a(f"v_cvt_pk_bf16_f32 v{O+1}, v{U+4}, v{U+6}")
            a(f"v_cvt_pk_bf16_f32 v{O+2}, -v{U+1}, -v{U+3}")
            a(f"v_cvt_pk_bf16_f32 v{O+3}, -v{U+5}, -v{U+7}")
            a(f"ds_write_b128 v{W_}, v[{O}:{O+3}] offset:{(ui*4+b)*1024}")
    a("s_waitcnt lgkmcnt(0)")
    k = 0
    for ui in range(nu):
        for b in range(4):
            O = pool[k % len(pool)]; k += 1
            a(f"ds_read_b64_tr_b16 v[{O}:{O+1}], v{R_} offset:{(ui*4+b)*1024}")
            a(f"ds_read_b64_tr_b16 v[{O+2}:{O+3}], v{R_} offset:{(ui*4+b)*1024+256}")
        kind, idx, jj0 = units[ui]
        for b in range(4):
            O = pool[(k-4+b) % len(pool)]
            base = S_T2 if kind == "H" else (S_HLO if jj0 == 0 else S_HHI)
            a(f"s_add_u32 s{S_T0}, s{base}, {(b*NKB + idx)*1024}")
            a(f"s_waitcnt lgkmcnt({6-2*b})")
            a(f"buffer_store_dwordx4 v[{O}:{O+3}], v{V_LANE16}, s[{SRD_X}:{SRD_X+3}], s{S_T0} offen {stflag}")
    stamp(a, opt, 6)
    if opt.get("stamps"):
        a("s_waitcnt vmcnt(0)")
        stamp(a, opt, 7); stamp_rt(a, opt, 15)
        stamp_flush(a, opt, 0)
    a("s_endpgm")

def p1_kernel(name, opt):
    a = Asm()
    a(kernel_begin(name))
    p1_common_prologue(a, opt)
    p1_type(a, "A", opt)
    a("L1_B:")
    p1_type(a, "B", opt)
    a("L1_done:")
    a("s_endpgm")
    a(kernel_desc(name, 256 + 172, 256))
    return a.text()

if __name__ == "__main__":
    import sys
    opt = {"stamps": True}
    s = header(["@launch kernel=p1_kernel grid=(256,1,1) block=(256,1,1) lds=163840"]) + p1_kernel("p1_kernel", opt)
    open("p1.s", "w").write(s)
```

```python
from asmlib import *
from g1 import *

S2_RB, S2_DB, S2_KI = 4, 5, 6
SRD_WT, SRD_H, SRD_O = 52, 60, 56
S2_OW = 68
S2_MW = 76
S2_ADV = 77
S2_H0, S2_H1 = 78, 79
S2_IT = 10
V2_LANE16 = 1
V2_DA, V2_DB = 240, 241
V2_DC = 242
V2_AW = 244
V2_AC = 248
V2_G = 14
V2_T = 16
V2_ACC = 56
A2_H = 0
A2_RING = 64

class VM:
    def __init__(self): self.ops = []
    def issue(self, id): self.ops.append(id)
    def count_after(self, id):
        idx = max(k for k, x in enumerate(self.ops) if x == id)
        return len(self.ops) - 1 - idx

class P2:
    def __init__(self, BN, opt):
        self.BN = BN; self.NF = BN // 16; self.opt = opt
        self.ND = BN // 16
        self.STG = BN * 256
        self.LA = opt.get("p2_la", 6)
    def acc(self, kind, f, tf):
        base = V2_ACC + (0 if kind == "G" else self.NF*8)
        return base + (f*2 + tf)*4
    def hreg(self, par, kb, tf): return A2_H + par*32 + (kb*2 + tf)*4
    def wloads(self, kind, par, n):
        kb, f = divmod(n, self.NF)
        d = A2_RING + 4*(n % 8)
        if kind == "G":
            off = par*self.STG + (f >> 2)*16384 + kb*4096
            return [f"ds_read_b64_tr_b16 a[{d}:{d+1}], v{V2_AW + (f & 3)} offset:{off}",
                    f"ds_read_b64_tr_b16 a[{d+2}:{d+3}], v{V2_AW + (f & 3)} offset:{off+2048}"]
        return [f"ds_read_b128 a[{d}:{d+3}], v{V2_AC + kb} offset:{par*self.STG + f*2048}"]
    def dma(self, par, i):
        pre = [f"s_add_u32 m0, s{S2_MW}, {par*self.STG + (i//4)*4096}"] if i % 4 == 0 else []
        return pre, f"buffer_load_dwordx4 v{V2_DA + (i & 1)}, s[{SRD_WT}:{SRD_WT+3}], s{S2_OW+i} offen offset:{1024*(i&3)} {self.opt.get('wdma','')} lds"
    def hload(self, par, kb, tf):
        d = self.hreg(par, kb, tf)
        return f"buffer_load_dwordx4 a[{d}:{d+3}], v{V2_LANE16}, s[{SRD_H}:{SRD_H+3}], s{S2_H0+tf} offen offset:{kb*1024} {self.opt.get('hload','sc1')}"

    def pair(self, a, kinds, nxt, zero=(False, False), dma=True, hl=True, vm=None, pre_hook=None, last=False):
        NF = self.NF; nfr = 4*NF; LA = self.LA
        S = self.S
        vm = self.vm
        nm = 2*nfr
        for par in (0, 1):
            kind = kinds[par]
            nk = kinds[1] if par == 0 else nxt
            fill = [[] for _ in range(nm + 1)]
            def put(p, it): fill[min(p, nm)].append(it)
            for n in range(nfr):
                tgt = n + LA
                if tgt < nfr: lds = self.wloads(kind, par, tgt); id = ("w", par, tgt)
                elif nk is not None: lds = self.wloads(nk, par ^ 1, tgt - nfr); id = ("w", par ^ 1, tgt - nfr)
                else: lds = []
                if tgt == nfr and par == 1 and nk is not None:
                    regs = range(V2_AW, V2_AW+4) if nk == "G" else range(V2_AC, V2_AC+4)
                    other = range(V2_AC, V2_AC+4) if nk == "G" else []
                    for r in regs: put(2*n - 1, ("s", f"v_xor_b32 v{r}, {2*self.STG}, v{r}"))
                    for k, r in enumerate(other): put(2*n + 1 + k, ("s", f"v_xor_b32 v{r}, {2*self.STG}, v{r}"))
                for k, t in enumerate(lds): put(2*n + k + (0 if len(lds) == 2 else 1), ("ds", t, id))
            if hl:
                for kb in range(4):
                    for tf in range(2):
                        put((kb+1)*2*NF + 2*tf + 1 if kb < 3 else nm, ("vm", self.hload(par, kb, tf), ("h", par, kb, tf)))
                put(nm, ("s", f"s_add_u32 s{S2_H0}, s{S2_H0}, 4096")); put(nm, ("s", f"s_add_u32 s{S2_H1}, s{S2_H1}, 4096"))
            mid = self.opt.get("p2_mid", nm // 4)
            put(mid, ("bar", par))
            if dma:
                dpar = par ^ 1
                put(mid + 1, ("s", f"s_add_u32 s{SRD_WT}, s{SRD_WT}, s{S2_ADV}"))
                put(mid + 1, ("s", f"s_addc_u32 s{SRD_WT+1}, s{SRD_WT+1}, 0"))
                if par == 1: put(mid + 1, ("s", f"s_xor_b32 s{S2_MW}, s{S2_MW}, {2*self.STG}"))
                span = nm - mid - 4
                for i in range(self.ND):
                    pre, ld = self.dma(dpar, i)
                    pos = mid + 3 + (i*span)//self.ND
                    for t in pre: put(pos - 1, ("s", t))
                    put(pos, ("vm", ld, ("d", dpar, i)))
            if pre_hook:
                for p, t in pre_hook(par): put(p, ("s", t))
            for i in range(nm + 1):
                for it in fill[i]:
                    if it[0] == "ds": S.ds(it[1], it[2])
                    elif it[0] == "vm": a(it[1]); vm.issue(it[2])
                    elif it[0] == "bar":
                        if not (last and par == 1):
                            a(f"s_waitcnt vmcnt({self.vmN(('d', par ^ 1, self.ND - 1), skip=self.dskip)})")
                            a("s_barrier")
                    else: a(it[1])
                if i < nm:
                    n, tf = divmod(i, 2)
                    kb, f = divmod(n, NF)
                    if n % 2 == 1: tf ^= 1
                    if f == 0 or (f == 1 and False):
                        hid = ("h", par, kb, tf)
                        if hid not in self.hdone:
                            a(f"s_waitcnt vmcnt({self.vmN(hid)})"); self.hdone.add(hid)
                    S.need([("w", par, n)])
                    t = self.acc(kind, f, tf); w = A2_RING + 4*(n % 8); h = self.hreg(par, kb, tf)
                    c = "0" if (zero[par] and kb == 0) else f"v[{t}:{t+3}]"
                    a(f"v_mfma_f32_16x16x32_bf16 v[{t}:{t+3}], a[{w}:{w+3}], a[{h}:{h+3}], {c}")
            self.hdone = set()
    def vmN(self, id, skip=0):
        ops = self.vm.ops
        idxs = [k for k, x in enumerate(ops) if x == id]
        idx = idxs[-1 - skip]
        return min(63, len(ops) - 1 - idx)

LDS2_X = 131072
LDS2_O = 0

def p2_setup_addr(a, P):
    BN = P.BN
    a(f"""
    v_lshrrev_b32 v17, 3, v16          ; u
    v_and_b32 v18, 7, v16
    v_lshrrev_b32 v19, 4, v16          ; q == u>>1
    v_and_b32 v20, 1, v17
    v_lshl_add_u32 v20, v20, 2, v19
    v_lshrrev_b32 v21, 1, v18
    v_xor_b32 v21, v21, v19
    v_lshlrev_b32 v21, 5, v21
    v_and_b32 v22, 1, v16
    v_lshl_add_u32 v21, v22, 4, v21
    v_lshl_add_u32 v{V2_DA}, v20, 11, v21
    v_mov_b32 v{V2_DB}, v{V2_DA}
    v_xor_b32 v23, v18, v19
    v_lshlrev_b32 v23, 4, v23
    v_lshl_add_u32 v{V2_DC}, v17, 11, v23
    ; W read: ((q>>1)*8 + 2r + (q&1))*128 + c*8 + ((f^r)*32)
    v_bfe_u32 v24, v16, 2, 2           ; r
    v_lshrrev_b32 v25, 5, v16
    v_lshlrev_b32 v25, 3, v25
    v_lshl_add_u32 v25, v24, 1, v25
    v_and_b32 v26, 1, v19
    v_add_u32 v25, v25, v26
    v_lshlrev_b32 v25, 7, v25
    v_and_b32 v27, 3, v16
    v_lshl_add_u32 v25, v27, 3, v25
    """)
    for f in range(4):
        a(f"v_xor_b32 v27, {f}, v24")
        a(f"v_lshl_add_u32 v{V2_AW+f}, v27, 5, v25")
    a(f"""
    v_and_b32 v28, 15, v16             ; rho
    v_lshrrev_b32 v29, 1, v28
    v_lshrrev_b32 v30, 5, v16
    v_xor_b32 v30, v30, v29
    v_lshlrev_b32 v30, 4, v30
    v_lshl_add_u32 v30, v28, 7, v30
    v_mul_u32_u24 v31, {BN*128}, v26
    v_add_u32 v{V2_AC}, v30, v31
    v_xor_b32 v{V2_AC+1}, 32, v{V2_AC}
    v_xor_b32 v{V2_AC+2}, 64, v{V2_AC}
    v_xor_b32 v{V2_AC+3}, 96, v{V2_AC}
    """)

def p2_main(a, P, NG, NS, kbG0, kbS0_minus, L, opt, switch_src):
    S = P.S
    def hook_g(par):
        if par == 0: return []
        mid = opt.get("p2_mid", (8*P.NF) // 4)
        blk = [f"s_cmp_eq_u32 s{S2_IT}, 1", f"s_cbranch_scc0 {L}_nosw"] + switch_src + [f"{L}_nosw:", f"s_sub_u32 s{S2_IT}, s{S2_IT}, 1"]
        return [(mid, "\n".join(blk))]
    def hook_s(par):
        if par == 0: return []
        mid = opt.get("p2_mid", (8*P.NF) // 4)
        blk = [f"s_cmp_eq_u32 s{S2_IT}, 1", f"s_cselect_b32 s{SRD_WT+2}, 0, s{SRD_WT+2}", f"s_sub_u32 s{S2_IT}, s{S2_IT}, 1"]
        return [(mid, "\n".join(blk))]
    P.pair(a, "GG", "G", zero=(True, False))
    a(f"s_mov_b32 s{S2_IT}, {NG//2 - 2}")
    a(".p2align 3")
    a(f"{L}_gloop:")
    st0 = (len(S.issued) - S.done)
    P.pair(a, "GG", "G", pre_hook=hook_g)
    assert (len(S.issued) - S.done) == st0
    a(f"s_cmp_lg_u32 s{S2_IT}, 0")
    a(f"s_cbranch_scc1 {L}_gloop")
    a(f"s_add_u32 s{S2_H0}, s{S2_H0}, {kbS0_minus}")
    a(f"s_add_u32 s{S2_H1}, s{S2_H1}, {kbS0_minus}")
    P.pair(a, "GG", "S")
    a(f"s_mov_b32 s{S2_IT}, {NS//2 - 1}")
    a(".p2align 3")
    a(f"{L}_sloop:")
    st0 = (len(S.issued) - S.done)
    P.pair(a, "SS", "S", pre_hook=hook_s)
    assert (len(S.issued) - S.done) == st0
    a(f"s_cmp_lg_u32 s{S2_IT}, 0")
    a(f"s_cbranch_scc1 {L}_sloop")
    P.pair(a, "SS", None, dma=False, hl=False, last=True)

def p2_kernel(name, opt):
    BN = 64
    P = P2(BN, opt)
    a = Asm()
    P.S = Stream(a); P.vm = VM(); P.hdone = set(); P.dskip = 0
    a(kernel_begin(name))
    a(f"""
    s_cmp_ge_u32 s2, 256
    s_cbranch_scc1 L2_done
    {"s_memtime s[98:99]" if opt.get("stamps") else ""}
    s_load_dwordx16 s[{S_PTR}:{S_PTR+15}], s[0:1], 0
    s_load_dwordx16 s[{S_PTR+16}:{S_PTR+31}], s[0:1], 64
    s_load_dwordx2 s[{S_PTR+32}:{S_PTR+33}], s[0:1], 128
    v_lshrrev_b32 v17, 6, v0
    v_and_b32 v16, 63, v0
    v_readfirstlane_b32 s{S_W}, v17
    v_lshlrev_b32 v{V2_LANE16}, 4, v16
    s_and_b32 s{S_T0}, s2, 7
    s_lshr_b32 s{S_T1}, s2, 3
    s_lshr_b32 s{S2_RB}, s{S_T0}, 1
    s_lshl_b32 s{S2_RB}, s{S2_RB}, 2
    s_and_b32 s{S_T2}, s{S_T1}, 3
    s_add_u32 s{S2_RB}, s{S2_RB}, s{S_T2}
    s_and_b32 s{S2_DB}, s{S_T0}, 1
    s_lshl_b32 s{S2_DB}, s{S2_DB}, 3
    s_lshr_b32 s{S_T2}, s{S_T1}, 2
    s_add_u32 s{S2_DB}, s{S2_DB}, s{S_T2}
    """)
    for i in range(P.ND):
        a(f"s_mov_b32 s{S2_OW+i}, {8*i*2048 + 3072 - 1024*(i&3)}")
    for s in (SRD_WT, SRD_H, SRD_O, SRD_T): a(f"s_mov_b32 s{s+3}, 0x20000")
    p2_setup_addr(a, P)
    a("s_waitcnt lgkmcnt(0)")
    stamp(a, opt, 0); stamp_rt(a, opt, 14)
    if opt.get("stamps"): a(f"v_writelane_b32 v{V_TMP+35}, s98, 12")
    a(f"""
    s_lshl_b32 s{S_T0}, s{S_W}, 16
    s_lshl_b32 s{S_T1}, s{S2_DB}, 7
    s_add_u32 s{S_T0}, s{S_T0}, s{S_T1}
    s_add_u32 s{SRD_WT}, s{ptr(P_WD)}, s{S_T0}
    s_addc_u32 s{SRD_WT+1}, s{ptr(P_WD)+1}, 0
    s_sub_u32 s{SRD_WT}, s{SRD_WT}, 3072
    s_subb_u32 s{SRD_WT+1}, s{SRD_WT+1}, 0
    s_mov_b32 s{SRD_WT+2}, {32*2048 + 3072}
    s_mov_b32 s{S2_ADV}, {128*2048}
    s_lshl_b32 s{S2_MW}, s{S_W}, 12
    s_lshl_b32 s{S_T0}, s{S2_RB}, 2
    s_add_u32 s{S_T0}, s{S_T0}, s{S_W}
    s_mul_i32 s{S_T0}, s{S_T0}, {2*NKB*1024}
    s_add_u32 s{SRD_H}, s{ptr(P_WS)}, s{S_T0}
    s_addc_u32 s{SRD_H+1}, s{ptr(P_WS)+1}, 0
    s_mov_b32 s{SRD_H+2}, {2*NKB*1024}
    s_mov_b32 s{S2_H0}, 0
    s_mov_b32 s{S2_H1}, {NKB*1024}
    """)
    vm = P.vm
    def dma_step(stage):
        for i in range(P.ND):
            if i % 4 == 0:
                a(f"s_add_u32 m0, s{S2_MW}, {stage*P.STG + (i//4)*4096}"); a("s_nop 0")
            a(P.dma(0, i)[1]); vm.issue(("d", stage & 1, i))
    def adv():
        a(f"s_add_u32 s{SRD_WT}, s{SRD_WT}, s{S2_ADV}"); a(f"s_addc_u32 s{SRD_WT+1}, s{SRD_WT+1}, 0")
    def h_step(par):
        for kb in range(4):
            for tf in range(2):
                a(P.hload(par, kb, tf)); vm.issue(("h", par, kb, tf))
        a(f"s_add_u32 s{S2_H0}, s{S2_H0}, 4096"); a(f"s_add_u32 s{S2_H1}, s{S2_H1}, 4096")
    p2_xd_issue(a, P, vm, opt)
    dma_step(0); h_step(0); adv(); dma_step(1); h_step(1); adv(); dma_step(2)
    a(f"s_xor_b32 s{S2_MW}, s{S2_MW}, {2*P.STG}")
    p2_xd_finish(a, P, vm, opt, range(4))
    a(f"s_waitcnt vmcnt({P.vmN(('d', 0, P.ND-1), skip=1)})")
    a("s_barrier")
    stamp(a, opt, 1)
    for n in range(P.LA):
        for t in P.wloads("G", 0, n): P.S.ds(t, ("w", 0, n))
    sw = [f"s_cmp_lt_u32 s{S_W}, 2",
          f"s_cselect_b32 s{SRD_WT}, s{ptr(P_CRE)}, s{ptr(P_CIM)}",
          f"s_cselect_b32 s{SRD_WT+1}, s{ptr(P_CRE)+1}, s{ptr(P_CIM)+1}",
          f"s_lshl_b32 s{S_T0}, s{S2_DB}, 1", f"s_and_b32 s{S_T1}, s{S_W}, 1", f"s_add_u32 s{S_T0}, s{S_T0}, s{S_T1}",
          f"s_lshl_b32 s{S_T0}, s{S_T0}, 16",
          f"s_add_u32 s{SRD_WT}, s{SRD_WT}, s{S_T0}", f"s_addc_u32 s{SRD_WT+1}, s{SRD_WT+1}, 0",
          f"s_sub_u32 s{SRD_WT}, s{SRD_WT}, {3072 + 128}", f"s_subb_u32 s{SRD_WT+1}, s{SRD_WT+1}, 0",
          f"s_mov_b32 s{S2_ADV}, 128",
          f"v_mov_b32 v{V2_DA}, v{V2_DC}", f"v_xor_b32 v{V2_DB}, 64, v{V2_DC}"]
    p2_main(a, P, 28, 16, 0, 0, "L2", opt, sw)
    stamp(a, opt, 2)
    p2_final(a, P, opt, range(4))
    a("L2_done:")
    a("s_endpgm")
    a(kernel_desc(name, 256 + 96, 256))
    return a.text()

def p2_xd_issue(a, P, vm, opt, dcol_sgpr=None):
    a(f"""
    s_lshl_b32 s{S_T0}, s{S2_RB}, 7
    s_lshr_b32 s{S_T1}, s{S_W}, 1
    s_lshl_b32 s{S_T1}, s{S_T1}, 6
    s_add_u32 s{S_T0}, s{S_T0}, s{S_T1}
    s_and_b32 s{S_T1}, s{S_W}, 1
    s_lshl_b32 s{S_T1}, s{S_T1}, 3
    s_add_u32 s{S_HLO}, s{S_T0}, s{S_T1}
    s_lshl_b32 s{S_HHI}, s{S2_DB}, 6
    """)
    if dcol_sgpr: a(dcol_sgpr)
    a(f"""
    s_lshl_b32 s{S_T0}, s{S_HLO}, 11
    s_lshl_b32 s{S_T1}, s{S_HHI}, 1
    s_add_u32 s{S_T0}, s{S_T0}, s{S_T1}
    s_add_u32 s{SRD_T}, s{ptr(P_X)}, s{S_T0}
    s_addc_u32 s{SRD_T+1}, s{ptr(P_X)+1}, 0
    s_mov_b32 s{SRD_T+2}, {64*2048}
    v_lshrrev_b32 v32, 2, v17
    v_lshlrev_b32 v32, 4, v32
    v_and_b32 v33, 3, v17
    v_add_u32 v32, v32, v33                     ; 16*(u>>2) + (u&3)
    v_lshl_add_u32 v32, v32, 11, v23
    v_xor_b32 v33, 64, v32
    s_lshl_b32 s{S_T2}, s{S_W}, 12
    s_add_u32 s{S_T2}, s{S_T2}, {LDS2_X}
    """)
    for tf in range(2):
        for hf in range(2):
            a(f"s_add_u32 m0, s{S_T2}, {(tf*2+hf)*1024}")
            a(f"s_mov_b32 s{S_T3}, {(4*tf + 32*hf)*2048}")
            a(f"buffer_load_dwordx4 v{32+hf}, s[{SRD_T}:{SRD_T+3}], s{S_T3} offen lds"); vm.issue(("x", tf, hf))
    a(f"""
    s_add_u32 s{SRD_T}, s{ptr(P_DSK)}, s{S_T1}
    s_addc_u32 s{SRD_T+1}, s{ptr(P_DSK)+1}, 0
    s_mov_b32 s{SRD_T+2}, 128
    v_lshlrev_b32 v34, 3, v19
    """)
    for f in range(4):
        a(f"buffer_load_dwordx2 v[{36+2*f}:{37+2*f}], v34, s[{SRD_T}:{SRD_T+3}], 0 offen offset:{32*f}"); vm.issue(("D", f))
    a(f"""
    s_add_u32 s{SRD_T}, s{ptr(P_WS)}, {WS_GATE}
    s_addc_u32 s{SRD_T+1}, s{ptr(P_WS)+1}, 0
    s_mov_b32 s{SRD_T+2}, 8192
    v_lshrrev_b32 v34, 2, v28
    v_lshlrev_b32 v34, 4, v34
    v_and_b32 v35, 3, v28
    v_add_u32 v34, v34, v35
    v_lshlrev_b32 v34, 2, v34
    s_lshl_b32 s{S_T0}, s{S_HLO}, 2
    """)
    a(f"buffer_load_dword v{V2_G}, v34, s[{SRD_T}:{SRD_T+3}], s{S_T0} offen {opt.get('gload','')}"); vm.issue(("g", 0))
    a(f"buffer_load_dword v{V2_G+1}, v34, s[{SRD_T}:{SRD_T+3}], s{S_T0} offen offset:16 {opt.get('gload','')}"); vm.issue(("g", 1))

def p2_xd_finish(a, P, vm, opt, own):
    own = list(own)
    for f in range(P.NF):
        if f not in own:
            for tf in range(2):
                for r in range(4): a(f"v_mov_b32 v{P.acc('S', f, tf)+r}, 0")
    a(f"s_lshl_b32 s{S_T2}, s{S_W}, 12")
    a(f"s_add_u32 s{S_T2}, s{S_T2}, {LDS2_X}")
    a(f"v_lshl_add_u32 v34, v26, 3, v30")
    a(f"v_add_u32 v34, s{S_T2}, v34")
    a(f"s_waitcnt vmcnt({P.vmN(('D', 3))})")
    for fi in range(4):
        a(f"v_xor_b32 v35, {32*fi}, v34")
        for tf in range(2):
            t = P.acc("S", own[fi], tf)
            a(f"ds_read_b64 v[{t}:{t+1}], v35 offset:{tf*2048}")
    for fi in range(4):
        d = 36 + 2*fi
        a(f"v_lshlrev_b32 v44, 16, v{d}"); a(f"v_and_b32 v45, 0xffff0000, v{d}")
        a(f"v_lshlrev_b32 v46, 16, v{d+1}"); a(f"v_and_b32 v47, 0xffff0000, v{d+1}")
        a(f"s_waitcnt lgkmcnt({6-2*fi})")
        for tf in range(2):
            t = P.acc("S", own[fi], tf)
            a(f"v_and_b32 v{t+3}, 0xffff0000, v{t+1}"); a(f"v_lshlrev_b32 v{t+2}, 16, v{t+1}")
            a(f"v_and_b32 v{t+1}, 0xffff0000, v{t}"); a(f"v_lshlrev_b32 v{t}, 16, v{t}")
            a(f"v_pk_mul_f32 v[{t}:{t+1}], v[{t}:{t+1}], v[44:45]")
            a(f"v_pk_mul_f32 v[{t+2}:{t+3}], v[{t+2}:{t+3}], v[46:47]")
            a(f"v_cvt_pk_bf16_f32 v{t}, v{t}, v{t+1}"); a(f"v_cvt_pk_bf16_f32 v{t+2}, v{t+2}, v{t+3}")
            a(f"v_and_b32 v{t+1}, 0xffff0000, v{t}"); a(f"v_lshlrev_b32 v{t}, 16, v{t}")
            a(f"v_and_b32 v{t+3}, 0xffff0000, v{t+2}"); a(f"v_lshlrev_b32 v{t+2}, 16, v{t+2}")
            for r in range(4): a(f"v_mul_f32 v{t+r}, 0.5, v{t+r}")

def p2_final(a, P, opt, own):
    own = list(own)
    mimic = opt.get("mimic2", True)
    a("s_barrier")
    a(f"""
    v_lshrrev_b32 v16, 4, v{V2_LANE16}
    v_and_b32 v17, 15, v16
    v_lshrrev_b32 v18, 4, v16
    v_and_b32 v19, 7, v17
    v_xor_b32 v19, v19, v18             ; (q ^ (rho&7))
    v_lshlrev_b32 v19, 4, v19
    v_lshl_add_u32 v19, v17, 8, v19
    s_lshl_b32 s{S_T0}, s{S_W}, 13
    v_add_u32 v19, s{S_T0}, v19
    v_xor_b32 v20, v17, v18
    v_lshlrev_b32 v20, 4, v20
    v_lshl_add_u32 v20, v18, 8, v20
    v_add_u32 v20, s{S_T0}, v20
    v_xor_b32 v21, 64, v20
    v_lshlrev_b32 v22, 12, v18
    v_lshl_add_u32 v22, v17, 4, v22
    s_lshl_b32 s{S_T0}, s{S_HLO}, 12
    s_lshl_b32 s{S_T1}, s{S_HHI}, 2
    s_add_u32 s{S_T0}, s{S_T0}, s{S_T1}
    s_add_u32 s{SRD_O}, s{ptr(P_OUT)}, s{S_T0}
    s_addc_u32 s{SRD_O+1}, s{ptr(P_OUT)+1}, 0
    s_mov_b32 s{SRD_O+2}, {56*4096}
    """)
    for tf in range(2):
        g = V2_G + tf
        a(f"v_sub_f32 v{24+2*tf}, 1.0, v{g}")
        a(f"v_cvt_pk_bf16_f32 v{24+2*tf}, v{24+2*tf}, v{24+2*tf}")
        a(f"v_and_b32 v{24+2*tf}, 0xffff0000, v{24+2*tf}")
        a(f"v_add_f32 v{25+2*tf}, v{g}, v{g}")
    for fi, f in enumerate(own):
        a(f"v_xor_b32 v23, {64*fi}, v19")
        for tf in range(2):
            G = P.acc("G", f, tf); Sx = P.acc("S", f, tf); k = 24 + 2*tf
            if mimic:
                a(f"v_cvt_pk_bf16_f32 v{G}, v{G}, v{G+1}"); a(f"v_cvt_pk_bf16_f32 v{G+2}, v{G+2}, v{G+3}")
                a(f"v_and_b32 v{G+1}, 0xffff0000, v{G}"); a(f"v_lshlrev_b32 v{G}, 16, v{G}")
                a(f"v_and_b32 v{G+3}, 0xffff0000, v{G+2}"); a(f"v_lshlrev_b32 v{G+2}, 16, v{G+2}")
            a(f"v_pk_mul_f32 v[{G}:{G+1}], v[{G}:{G+1}], v[{k}:{k+1}] op_sel_hi:[1,0]")
            a(f"v_pk_mul_f32 v[{G+2}:{G+3}], v[{G+2}:{G+3}], v[{k}:{k+1}] op_sel_hi:[1,0]")
            if mimic:
                a(f"v_cvt_pk_bf16_f32 v{G}, v{G}, v{G+1}"); a(f"v_cvt_pk_bf16_f32 v{G+2}, v{G+2}, v{G+3}")
                a(f"v_and_b32 v{G+1}, 0xffff0000, v{G}"); a(f"v_lshlrev_b32 v{G}, 16, v{G}")
                a(f"v_and_b32 v{G+3}, 0xffff0000, v{G+2}"); a(f"v_lshlrev_b32 v{G+2}, 16, v{G+2}")
            a(f"v_pk_fma_f32 v[{G}:{G+1}], v[{Sx}:{Sx+1}], v[{k}:{k+1}], v[{G}:{G+1}] op_sel:[0,1,0]")
            a(f"v_pk_fma_f32 v[{G+2}:{G+3}], v[{Sx+2}:{Sx+3}], v[{k}:{k+1}], v[{G+2}:{G+3}] op_sel:[0,1,0]")
            a(f"ds_write_b128 v23, v[{G}:{G+3}] offset:{tf*4096}")
    a("s_waitcnt lgkmcnt(0)")
    for i in range(8):
        d = P.acc("S", own[i >> 1], i & 1)
        a(f"ds_read_b128 v[{d}:{d+3}], v{20 + (i & 1)} offset:{i*1024}")
    for i in range(8):
        d = P.acc("S", own[i >> 1], i & 1)
        a(f"s_mov_b32 s{S_T0}, {(4*(i >> 2) + 16*(i & 3))*4096}")
        a(f"s_waitcnt lgkmcnt({7-i})")
        a(f"buffer_store_dwordx4 v[{d}:{d+3}], v22, s[{SRD_O}:{SRD_O+3}], s{S_T0} offen {opt.get('ostore','')}")
    stamp(a, opt, 3)
    if opt.get("stamps"):
        a("s_waitcnt vmcnt(0)")
        stamp(a, opt, 4); stamp_rt(a, opt, 15)
        stamp_flush(a, opt, 1)

def full(opt):
    s = header(["@launch kernel=p1_kernel grid=(256,1,1) block=(256,1,1) lds=163840",
                "@launch kernel=p2_kernel grid=(256,1,1) block=(256,1,1) lds=163840"])
    return s + p1_kernel("p1_kernel", opt) + p2_kernel("p2_kernel", opt)

if __name__ == "__main__":
    open("full_st.s", "w").write(full({"stamps": True}))
    open("full.s", "w").write(full({}))
```

```python
from sched import Item, place
from g1 import Stream, reg
import g1, g2
from g2 import (V2_DA, V2_DB, V2_AW, V2_AC, SRD_WT, SRD_H, S2_OW, S2_MW, S2_ADV, S2_H0, S2_H1, A2_H, A2_RING, V2_LANE16)

def emit(a, S, vm, slots, mf, n, on_bar=None):
    for i in range(n + 1):
        S.now += 1
        for it in slots[i]:
            if it.kind == "ds": S.ds(it.text, it.id)
            elif it.kind == "vm":
                a(it.text)
                if vm is not None: vm.issue(it.id)
            elif it.kind == "blk" and callable(it.text): it.text()
            else: a(it.text)
        if i < n:
            pre = mf[i][2] if len(mf[i]) > 2 else None
            if pre: pre()
            S.need(mf[i][1])
            a(mf[i][0])

def place2(n, items, reserved):
    fixed = [it for it in items if it.lo == it.hi and it.chain is None]
    res = dict(reserved)
    for it in fixed: res[it.lo] = res.get(it.lo, 0) + it.cost
    rest = [it for it in items if it not in fixed]
    slots, used = place(n, rest, res)
    for it in fixed: slots[min(it.lo, n)].append(it)
    return slots, used

class P1S(g1.P1):
    def body(self, a, st, first=False, dma=True, extra=None, endwait="vmcnt(0)", barrier=True, vmx=None):
        S = Stream(a); S.age = self.opt.get("p1_age", 8)
        order = ([] if first else [17, 18, 19]) + list(range(17))
        mf = []; start = {}
        for pos, gi in enumerate(order):
            key = ("prev", gi) if (not first and pos < 3) else gi
            start[key] = len(mf)
            ms = self.group_mfmas(gi, first)
            if not first and pos < 3: ms = [(t, []) for t, _ in ms]
            mf += ms
        n = len(mf)
        M = self.opt.get("p1_margin", 7)
        use = {}
        for i, (t, ids) in enumerate(mf):
            for id in ids: use.setdefault(id, i)
        ds = []
        def add(texts, id, lo):
            hi = use.get(id, n + M - self.opt.get("p1_endmargin", 5)) - M
            for t in texts: ds.append((max(hi, lo), lo, t, id))
        t0 = 0 if first else 1
        for gi in range(20):
            lo = t0 if (gi < 2 or (first and gi < 5)) else (8*(gi-1) if gi < 5 else start[gi-4])
            add(self.group_loads(gi, st), ("g", gi), lo)
        for jj in range(8):
            add([self.x_load(0, jj, st)], ("x", 0, jj), t0)
            add([self.x_load(1, jj, st)], ("x", 1, jj), max(start[0], start[1+jj] if jj < 8 else 0))
        ds.sort(key=lambda d: d[0])
        items = [Item("ds", t, lo, hi, id, chain="ds") for hi, lo, t, id in ds]
        vms = []
        if dma:
            L = self.dma_list(st ^ 1)
            p0 = self.opt.get("dma0", 13); dp = self.opt.get("dmastep", 4)
            adv = self.advance()
            if self.opt.get('p1_noadv') and not first: adv = ['s_nop 0']*6
            for k in range(3):
                items.append(Item("s", adv[2*k] + "\n" + adv[2*k+1], 0, p0 - 2, cost=8))
            prev = 0
            for k, (pre, ld) in enumerate(L):
                pos = p0 + int(k*dp)
                for t in pre: items.append(Item("s", t, prev + 1, pos - 1))
                items.append(Item("vm", ld, pos, pos))
                prev = pos
        if extra: items += extra
        reserved = {start[g]: 4 for g in range(17)}
        slots, used = place2(n, items, reserved)
        self.last_used = used
        emit(a, S, None, slots, mf, n)
        a(f"s_waitcnt {endwait} lgkmcnt(0)")
        if barrier: a("s_barrier")

class P2S(g2.P2):
    RS = 12
    def kf(self, n, alt):
        if not alt: return divmod(n, self.NF)
        return ((n & 15) >> 2, (n & 3) + (4 if n < 16 else 0))
    def wloads(self, kind, par, n, alt=False):
        kb, f = self.kf(n, alt)
        d = A2_RING + 4*((n + (self.rot if par else 0)) % self.RS)
        if kind == "G":
            off = par*self.STG + (f >> 2)*16384 + kb*4096
            return [f"ds_read_b64_tr_b16 a[{d}:{d+1}], v{V2_AW + (f & 3)} offset:{off}",
                    f"ds_read_b64_tr_b16 a[{d+2}:{d+3}], v{V2_AW + (f & 3)} offset:{off+2048}"]
        return [f"ds_read_b128 a[{d}:{d+3}], v{V2_AC + kb} offset:{par*self.STG + f*2048}"]
    def setup(self):
        self.RS = self.opt.get("p2_rs", 16)
        assert 64 % self.RS == 0
        self.rot = 32 % self.RS
        self.WG = self.opt.get("p2_wg", 2)
        self.LA = self.opt.get("p2_la", 7)
        self.BAR = self.opt.get("p2_bar", 46)
    def pair(self, a, kinds, nxt, zero=(False, False), first=False, last=False, extra=None, single=False):
        NF = self.NF; nfr = 32; nm = 64; LA = self.LA; WG = self.WG; BAR = self.BAR
        S = self.S; vm = self.vm
        for par in ((0,) if single else (0, 1)):
            kind = kinds[par]; nk = kinds[1] if par == 0 else nxt
            altl = last and self.opt.get("sentfirst", 1)
            alt = altl and par == 1
            items = []
            for n in range(nfr):
                tgt = n + LA
                lo = 2*n
                if tgt < nfr: lds = self.wloads(kind, par, tgt, alt); id = ("w", par, tgt)
                elif nk is not None:
                    lds = self.wloads(nk, par ^ 1, tgt - nfr, altl); id = ("w", par ^ 1, tgt - nfr)
                    assert lo > BAR
                else: lds = []
                if tgt == nfr and par == 1 and nk is not None:
                    regs = range(V2_AW, V2_AW+4) if nk == "G" else range(V2_AC, V2_AC+4)
                    for r in regs: items.append(Item("v", f"v_xor_b32 v{r}, {2*self.STG}, v{r}", lo - 1, lo + 1, chain="ds"))
                for t in lds: items.append(Item("ds", t, lo, lo + 2, id, chain="ds"))
            if par == 1 and nk == "G":
                for r in range(V2_AC, V2_AC+4): items.append(Item("v", f"v_xor_b32 v{r}, {2*self.STG}, v{r}", 2, 40))
            vmpos = lambda p, text, id: items.append(Item("vm", text, p, p, id))
            fst = first and par == 0
            if not fst and not last:
                for i, p in ((2, 1), (3, 5), (4, 17), (5, 21), (6, 33), (7, 37)):
                    pre, ld = self.dma(par, i)
                    for t in pre: items.append(Item("s", t, 6, 16))
                    vmpos(p, ld, ("d", par, i))
            if not last and not single:
                blk = [f"s_add_u32 s{SRD_WT}, s{SRD_WT}, s{S2_ADV}\ns_addc_u32 s{SRD_WT+1}, s{SRD_WT+1}, 0"]
                items.append(Item("s", blk[0], BAR + 1, BAR + 2, cost=8, chain="adv"))
                if par == 1: items.append(Item("s", f"s_xor_b32 s{S2_MW}, s{S2_MW}, {2*self.STG}", 38, BAR + 1, chain="m0"))
                pre, ld = self.dma(par ^ 1, 0)
                items.append(Item("s", pre[0], 38, BAR + 2, chain="m0"))
                vmpos(49, ld, ("d", par ^ 1, 0))
                vmpos(53, self.dma(par ^ 1, 1)[1], ("d", par ^ 1, 1))
            if fst:
                for k_, p in enumerate((1, 3, 5, 9, 11, 13, 17, 21)):
                    vmpos(p, self.hload(1, k_ >> 1, k_ & 1), ("h", 1, k_ >> 1, k_ & 1))
                items.append(Item("s", f"s_add_u32 s{S2_H0}, s{S2_H0}, 4096", 22, 24)); items.append(Item("s", f"s_add_u32 s{S2_H1}, s{S2_H1}, 4096", 22, 24))
            if not fst and not (last and par == 1):
                vmpos(9, self.hload(par ^ 1, 3, 0), ("h", par ^ 1, 3, 0)); vmpos(13, self.hload(par ^ 1, 3, 1), ("h", par ^ 1, 3, 1))
                if not last:
                    items.append(Item("s", f"s_add_u32 s{S2_H0}, s{S2_H0}, 4096", 14, 24)); items.append(Item("s", f"s_add_u32 s{S2_H1}, s{S2_H1}, 4096", 14, 24))
            if not last:
                for kb, p in ((0, 25), (1, 41), (2, 57)):
                    vmpos(p, self.hload(par, kb, 0), ("h", par, kb, 0)); vmpos(p + 4, self.hload(par, kb, 1), ("h", par, kb, 1))
            if not last and self.pf2:
                pp = self.opt.get("p2pf_pos", 35)
                vmpos(pp, self.pf2[par], ("p", par))
                if par == 1: items.append(Item("v", self.pf2[2], pp + 1, pp + 8))
            if not (last and par == 1):
                def bar(par=par, fst=fst):
                    n_ = self.vmN(('d', par ^ 1, 7))
                    if fst: n_ = min(n_, self.vmN(('h', 1, 0, 0)) + 1)
                    a(f"s_waitcnt vmcnt({n_})")
                    a("s_barrier")
                    if fst and self.after_first_bar: a(self.after_first_bar)
                items.append(Item("blk", bar, BAR, BAR, cost=8))
            if extra: items += extra(par)
            mf = []
            for i in range(nm):
                n, tf = divmod(i, 2)
                kb, f = self.kf(n, alt)
                if n % 2 == 1: tf ^= 1
                pre = None
                if (i % 16 == 0 and not alt) or (alt and i < 32 and i % 8 == 0):
                    pre = (lambda kb=kb, par=par: a(f"s_waitcnt vmcnt({self.vmN(('h', par, kb, 1))})"))
                need = [("w", par, min(nfr - 1, (n // WG)*WG + WG - 1))] if (i % (2*WG) == 0) else []
                t = self.acc(kind, f, tf); w = A2_RING + 4*((n + (self.rot if par else 0)) % self.RS); h = self.hreg(par, kb, tf)
                c = "0" if (zero[par] and kb == 0) else f"v[{t}:{t+3}]"
                mf.append((f"v_mfma_f32_16x16x32_bf16 v[{t}:{t+3}], a[{w}:{w+3}], a[{h}:{h+3}], {c}", need, pre))
            if last and par == 1: mf += [(t, [], None) for t in self.xd_mfma]
            reserved = {}
            for i in range(0, nm, 2*WG): reserved[i] = 4
            slots, used = place2(len(mf), items, reserved)
            self.last_used = used
            emit(a, S, vm, slots, mf, len(mf))

    def last2(self, a, extra, p0=0):
        LA = self.LA; WG = self.WG; S = self.S; vm = self.vm
        p1 = p0 ^ 1
        order = [(p0, 0, f) for f in range(8)] + [(p0, kb, f) for kb in (1, 2, 3) for f in range(4, 8)] + [(p1, kb, f) for kb in range(4) for f in range(4, 8)]
        order += [(p0, kb, f) for kb in (1, 2, 3) for f in range(4)] + [(p1, kb, f) for kb in range(4) for f in range(4)]
        BAR = self.opt.get("l2_bar", 24)
        items = []
        areg = {p0: V2_AC, p1: V2_AC if p0 == 0 else V2_AW}
        if p0 == 1:
            for r in range(4): items.append(Item("v", f"v_xor_b32 v{V2_AW+r}, {2*self.STG}, v{V2_AC+r}", 0, 20))
        for n in range(64 - LA):
            par, kb, f = order[n + LA]
            d = A2_RING + 4*((n + LA) % self.RS)
            assert par == p0 or 2*n > BAR
            items.append(Item("ds", f"ds_read_b128 a[{d}:{d+3}], v{areg[par] + kb} offset:{par*self.STG + f*2048}", 2*n, 2*n + 2, ("w", p0, n + LA), chain="ds"))
        items.append(Item("vm", self.hload(p1, 3, 0), 1, 1, ("h", p1, 3, 0))); items.append(Item("vm", self.hload(p1, 3, 1), 3, 3, ("h", p1, 3, 1)))
        def bar():
            a(f"s_waitcnt vmcnt({self.vmN(('d', p1, 7))})"); a("s_barrier")
        items.append(Item("blk", bar, BAR, BAR, cost=8))
        items += extra
        mf = []; seen = set()
        for i in range(128):
            n, tf = divmod(i, 2)
            par, kb, f = order[n]
            if n % 2 == 1: tf ^= 1
            pre = None
            if (par, kb) not in seen:
                seen.add((par, kb))
                pre = (lambda kb=kb, par=par: a(f"s_waitcnt vmcnt({self.vmN(('h', par, kb, 1))})"))
            need = [("w", p0, min(63, (n // WG)*WG + WG - 1))] if (i % (2*WG) == 0) else []
            t = self.acc("S", f, tf); w = A2_RING + 4*(n % self.RS); h = self.hreg(par, kb, tf)
            mf.append((f"v_mfma_f32_16x16x32_bf16 v[{t}:{t+3}], a[{w}:{w+3}], a[{h}:{h+3}], v[{t}:{t+3}]", need, pre))
        mf += [(t, [], None) for t in self.xd_mfma]
        reserved = {i: 4 for i in range(0, 128, 2*WG)}
        slots, used = place2(len(mf), items, reserved)
        emit(a, S, vm, slots, mf, len(mf))

    def main(self, a, NG, NS, jump, L, switch_src, S_IT):
        S = self.S; BAR = self.BAR
        def hook_g(par):
            if par == 0: return [Item("s", f"s_sub_u32 s{S_IT}, s{S_IT}, 1", 2, 40), Item("vm", self.spoll, 59, 59, "sp")]
            blk = [f"s_cmp_eq_u32 s{S_IT}, 0", f"s_cbranch_scc0 {L}_nosw"] + switch_src + [f"{L}_nosw:"]
            out = [Item("s", "\n".join(blk), 38, BAR, cost=8)]
            if self.pf2:
                blk2 = [f"s_cmp_eq_u32 s{S_IT}, {self.pf2sw_it}", f"s_cbranch_scc0 {L}_nosw2"] + self.pf2sw + [f"{L}_nosw2:"]
                out.append(Item("s", "\n".join(blk2), 50, 60, cost=8))
            return out
        def hook_s(par):
            if par == 0: return [Item("s", f"s_sub_u32 s{S_IT}, s{S_IT}, 1", 2, 40)]
            if self.opt.get("shift", 1): return []
            return [Item("s", f"s_cmp_eq_u32 s{S_IT}, 0\ns_cselect_b32 s{SRD_WT+2}, 0, s{SRD_WT+2}", 38, BAR, cost=8)]
        def hook_j(par):
            if par == 1: return []
            return [Item("s", f"s_add_u32 s{S2_H0}, s{S2_H0}, {jump}", 14, 24), Item("s", f"s_add_u32 s{S2_H1}, s{S2_H1}, {jump}", 14, 24),
                    Item("blk", lambda: self.scheck(self.vmN("sp")), 19, 19, cost=30)]
        self.pair(a, "GG", "G", zero=(True, False), first=True, extra=self.first_extra)
        self.vm.ops = [o for o in self.vm.ops if isinstance(o, tuple) and o[0] in ("h", "d", "p")]
        self.stampfn(19)
        a(f"s_mov_b32 s{S_IT}, {NG//2 - 2}")
        a(".p2align 3")
        a(f"{L}_gloop:")
        st0 = (len(S.issued) - S.done)
        self.pair(a, "GG", "G", extra=hook_g)
        assert (len(S.issued) - S.done) == st0
        a(f"s_cmp_lg_u32 s{S_IT}, 0")
        a(f"s_cbranch_scc1 {L}_gloop")
        self.stampfn(20)
        self.pair(a, "GG", "S", extra=hook_j)
        self.stampfn(21)
        self.pair(a, "SS", "S", zero=(True, False), extra=self.sfirst_extra)
        self.stampfn(25)
        self.vm.ops = [o for o in self.vm.ops if isinstance(o, tuple) and o[0] in ("h", "d", "p")]
        shift = self.opt.get("shift", 1)
        if shift: a(f"s_sub_u32 s{S_IT}, 2, s{self.S_KI}")
        else: a(f"s_mov_b32 s{S_IT}, {NS//2 - 2}")
        a(".p2align 3")
        a(f"{L}_sloop:")
        st0 = (len(S.issued) - S.done)
        self.pair(a, "SS", "S", extra=hook_s)
        assert (len(S.issued) - S.done) == st0, (st0, len(S.issued) - S.done)
        a(f"s_cmp_lg_u32 s{S_IT}, 0")
        a(f"s_cbranch_scc1 {L}_sloop")
        self.stampfn(22)
        if shift:
            self.pair(a, "SS", None, single=True)
            self.last2(a, self.last2_extra(), 1)
        elif self.opt.get("last2", 1): self.last2(a, self.last2_extra())
        else: self.pair(a, "SS", None, last=True, extra=self.last_extra)
```

```python
COST = {"ds": 4, "s": 4, "v": 4, "vm": 13, "wait": 4, "blk": 0}

class Item:
    def __init__(self, kind, text, lo, hi, id=None, cost=None, chain=None):
        self.kind = kind; self.text = text; self.lo = lo; self.hi = hi; self.id = id
        self.cost = COST[kind] if cost is None else cost
        self.chain = chain

def place(n, items, reserved=None, budget=8):
    slots = [[] for _ in range(n + 1)]
    used = [0]*(n + 1)
    if reserved:
        for p, c in reserved.items(): used[p] += c
    pend = list(items)
    for k, it in enumerate(pend): it.seq = k; it.hi = min(it.hi, n); it.lo = min(it.lo, it.hi)
    last = {}
    for it in reversed(pend):
        if it.chain is not None:
            if it.chain in last: it.hi = min(it.hi, last[it.chain])
            last[it.chain] = it.hi
            it.lo = min(it.lo, it.hi)
    done = set()
    for p in range(n + 1):
        while True:
            heads = {}
            cand = []
            for it in pend:
                if it.chain is not None:
                    if it.chain in heads: continue
                    heads[it.chain] = it
                if it.lo <= p: cand.append(it)
            if not cand: break
            cand.sort(key=lambda it: (it.hi, it.seq))
            pick = None
            for it in cand:
                if it.hi <= p: pick = it; break
            if pick is None:
                for it in cand:
                    if used[p] + it.cost <= budget or (used[p] == 0): pick = it; break
            if pick is None: break
            slots[p].append(pick); used[p] += pick.cost; pend.remove(pick)
    assert not pend
    return slots, used
```

```python
from asmlib import *
import math, struct, re
from g1 import Stream, reg, f2u, split_const, LOG2E, GELU_C0, GELU_C1
import g1

NKB = 176
WS_GATE  = 0x1600000
WS_GRAN  = 0x1610000
WS_EPOCH = 0x1640000
WS_CENS  = 0x1641000
WS_HFLG  = 0x1642000
WS_SFLG  = 0x1643000
WS_XFLG  = 0x1650000
WS_XBUF  = 0x1800000
WS_STAMP = 0x1700000

S_W = 3
S_M, S_C, S_GRP, S_RH, S_CC, S_N, S_CNT = 4, 5, 6, 7, 8, 9, 10
S_T0, S_T1, S_T2, S_T3 = 11, 12, 13, 14
S_KI = 15
S_PTR = 16
def ptr(i): return S_PTR + 2*i
P_X, P_LRE, P_LIM, P_BRE, P_BIM, P_CRE, P_CIM, P_LDT, P_DSK, P_BX, P_WG, P_WU, P_WD, P_GW, P_OUT, P_DBG, P_WS = range(17)
SRD_PF, SRD_PG, S_PFADV, S_PGADV = 20, 24, 28, 29
S_ST = 50
SRD_X, SRD_W, SRD_B, SRD_T = 52, 56, 60, 64
S_OX, S_OW, S_OB = 68, 76, 84
S_MX, S_MW, S_MB = 89, 90, 91
S_K0, S_K1 = 92, 94
S_HLO, S_HHI, S_NONCE, S_XCC = 96, 97, 98, 99
S_FAST = 100
SRD_WT, SRD_H, SRD_O = 52, 60, 56
S2_OW, S2_MW, S2_ADV, S2_H0, S2_H1, S2_RB, S2_DB = 68, 76, 77, 78, 79, 80, 81
S2_IT = 10
S_GOFF = 82
S_SLOT = 83
S_FLG = 84
S_PUB = 85
S_RDY = 86
S_OWN = 88
V2_FA, V2_GA = 54, 243

V_LANE16 = 1
V_DX0, V_DX1, V_DW, V_DB = 2, 3, 4, 5
V_AX, V_AW, V_AB = 6, 10, 14
V_EPO = 18
V_TMP = 20
V_PF, V_PG, V_PD, V_CPF, V_ZERO = 20, 21, 22, 43, 23
V_STAMP = 55
V_ACC0 = 56
A_ACC_N = 88
A_X0, A_X1, A_RING = 88, 120, 152
for k in ("V_DX0 V_DX1 V_DW V_DB V_AX V_AW V_AB V_ACC0 A_ACC_N A_X0 A_X1 A_RING SRD_X SRD_W SRD_B S_OX S_OW S_OB S_MX S_MW S_MB").split():
    assert getattr(g1, k) == globals()[k], k

LDS_PT = 139264
LDS_F = 142336
LDS_PW = 152576
LDS_C0 = 162816
LDS_TR = 98304

def stamp(a, opt, idx, rt=False):
    if not opt.get("stamps"): return
    if rt: return
    if opt.get("lite") and idx not in (17,): return
    a(f"s_memtime s[{S_ST}:{S_ST+1}]")
    a("s_waitcnt lgkmcnt(0)")
    a(f"v_writelane_b32 v{V_STAMP}, s{S_ST}, {idx}")
    a(f"s_memrealtime s[{S_ST}:{S_ST+1}]")
    a("s_waitcnt lgkmcnt(0)")
    a(f"v_writelane_b32 v{V_STAMP}, s{S_ST}, {idx+32}")

def stamp_flush(a, opt):
    if not opt.get("stamps"): return
    a(f"""
    s_add_u32 s{SRD_T}, s{ptr(P_WS)}, {WS_STAMP}
    s_addc_u32 s{SRD_T+1}, s{ptr(P_WS)+1}, 0
    s_mov_b32 s{SRD_T+2}, 0x40000
    s_lshl_b32 s{S_T0}, s2, 2
    s_add_u32 s{S_T0}, s{S_T0}, s{S_W}
    s_lshl_b32 s{S_T0}, s{S_T0}, 8
    v_lshrrev_b32 v53, 2, v{V_LANE16}
    buffer_store_dword v{V_STAMP}, v53, s[{SRD_T}:{SRD_T+3}], s{S_T0} offen
    s_mov_b64 exec, -1
    """)

def emit_exp(a, dst, src, t0, t1):
    hi, lo = split_const(LOG2E)
    a(f"s_mov_b32 s{S_T0}, {hex(f2u(hi))}")
    a(f"s_mov_b32 s{S_T1}, {hex(f2u(lo))}")
    a(f"v_mul_f32 v{t0}, s{S_T0}, v{src}")
    a(f"v_fma_f32 v{t1}, v{src}, s{S_T0}, -v{t0}")
    a(f"v_fma_f32 v{t1}, v{src}, s{S_T1}, v{t1}")
    a(f"v_exp_f32 v{t0}, v{t0}")
    a(f"v_mul_f32 v{t1}, {hex(f2u(math.log(2.0)))}, v{t1}")
    a(f"v_fma_f32 v{dst}, v{t0}, v{t1}, v{t0}")

def emit_csq(a, dr, di, sr, si, t):
    a(f"v_mul_f32 v{t}, v{si}, v{si}")
    a(f"v_mul_f32 v{di}, v{sr}, v{si}")
    a(f"v_fma_f32 v{dr}, v{sr}, v{sr}, -v{t}")
    a(f"v_add_f32 v{di}, v{di}, v{di}")

def cstep1(tmp, h, u, pp):
    return f"v_pk_fma_f32 v[{tmp}:{tmp+1}], v[{pp}:{pp+1}], v[{h}:{h+1}], v[{u}:{u+1}] op_sel:[1,1,0] op_sel_hi:[1,0,1] neg_lo:[1,0,0]"
def cstep2(dst, h, tmp, pp):
    return f"v_pk_fma_f32 v[{dst}:{dst+1}], v[{pp}:{pp+1}], v[{h}:{h+1}], v[{tmp}:{tmp+1}] op_sel:[0,0,0] op_sel_hi:[0,1,1]"

import gm, g2
from g2 import VM
from sched import Item
V2_DA, V2_DB, V2_DC, V2_AW, V2_AC = g2.V2_DA, g2.V2_DB, g2.V2_DC, g2.V2_AW, g2.V2_AC
class P1(gm.P1S):
    def pf_list(self):
        return [f"buffer_load_dword v{V_PD}, v{V_PF}, s[{SRD_PF}:{SRD_PF+3}], 0 offen",
                f"v_add_u32 v{V_PF}, s{S_PFADV}, v{V_PF}",
                f"buffer_load_dword v{V_PD}, v{V_PG}, s[{SRD_PG}:{SRD_PG+3}], 0 offen {self.opt.get('pgflag','')}",
                f"v_add_u32 v{V_PG}, s{S_PGADV}, v{V_PG}"]

def load_ptrs(a):
    a(f"s_load_dwordx16 s[{S_PTR}:{S_PTR+15}], s[0:1], 0")
    a(f"s_load_dwordx16 s[{S_PTR+16}:{S_PTR+31}], s[0:1], 64")
    a(f"s_load_dwordx2 s[{S_PTR+32}:{S_PTR+33}], s[0:1], 128")

def add64(a, d, s, off):
    a(f"s_add_u32 s{d}, s{s}, {off}")
    a(f"s_addc_u32 s{d+1}, s{s+1}, 0")

def common_prologue(a, opt):
    load_ptrs(a)
    if opt.get("stamps"): a("s_memtime s[92:93]"); a("s_memrealtime s[96:97]"); a("s_waitcnt lgkmcnt(0)"); a(f"v_writelane_b32 v{V_STAMP}, s92, 0"); a(f"v_writelane_b32 v{V_STAMP}, s96, 32")
    a(f"""
    s_getpc_b64 s[{S_K0}:{S_K0+1}]
    s_cmp_ge_u32 s2, 256
    s_cbranch_scc1 L_done
    s_bfe_u32 s{S_T0}, s2, 0x30003
    v_and_b32 v63, 7, v0
    v_lshlrev_b32 v64, 7, v0
    v_cmp_eq_u32 vcc, s{S_T0}, v63
    s_and_b32 s{S_KI}, s2, 1
    v_cndmask_b32 v{V_CPF}, 0, v64, vcc
    """)
    if not opt.get("nocpf"): a(f"global_load_dword v{V_PD}, v{V_CPF}, s[{S_K0}:{S_K0+1}]")
    a(f"""
    v_lshrrev_b32 v63, 6, v0
    v_and_b32 v64, 63, v0              ; lane
    v_readfirstlane_b32 s{S_W}, v63
    v_lshlrev_b32 v{V_LANE16}, 4, v64
    s_bfe_u32 s{S_M}, s2, 0x30003
    s_bfe_u32 s{S_GRP}, s2, 0x20001
    s_lshl_b32 s{S_N}, s{S_KI}, 2
    s_add_u32 s{S_GRP}, s{S_GRP}, s{S_N}     ; column group: the K half a workgroup consumes is produced by ids of its own parity
    s_lshr_b32 s{S_C}, s2, 6
    s_lshl_b32 s{S_N}, s{S_GRP}, 2
    s_add_u32 s{S_N}, s{S_N}, s{S_C}
    s_lshr_b32 s{S_RH}, s{S_W}, 1
    s_and_b32 s{S_CC}, s{S_W}, 1
    """)
    for i in range(8):
        a(f"s_mov_b32 s{S_OX+i}, {(32*(i&1) + 4*(i>>1))*2048 + 3072 - 1024*(i&3)}")
        a(f"s_mov_b32 s{S_OW+i}, {(16*(i>>1) + 4*(i&1))*7168 + 3072 - 1024*(i&3)}")
    for i in range(5):
        a(f"s_mov_b32 s{S_OB+i}, {i*16*2048 + 3072 - 1024*(i&3)}")
    for s_ in (SRD_X, SRD_W, SRD_B, SRD_T):
        a(f"s_mov_b32 s{s_+3}, 0x20000")
    a(f"s_mov_b32 s{SRD_X+2}, {64*2048 + 3072}")
    a(f"s_mov_b32 s{SRD_W+2}, {64*7168 + 3072}")
    a(f"s_mov_b32 s{SRD_B+2}, {80*2048 + 3072}")
    a(f"""
    v_lshrrev_b32 v65, 3, v64          ; u
    v_and_b32 v66, 7, v64
    v_lshrrev_b32 v67, 4, v64          ; q
    v_xor_b32 v68, v66, v67
    v_lshlrev_b32 v68, 4, v68
    v_lshrrev_b32 v69, 5, v64
    v_lshlrev_b32 v69, 4, v69
    v_and_b32 v70, 3, v65
    v_add_u32 v69, v69, v70
    v_lshl_add_u32 v{V_DX0}, v69, 11, v68
    v_xor_b32 v{V_DX1}, 64, v{V_DX0}
    v_and_b32 v70, 1, v65
    v_lshl_add_u32 v70, v70, 3, v67
    v_mul_u32_u24 v70, 7168, v70
    v_lshrrev_b32 v71, 1, v66
    v_xor_b32 v71, v71, v67
    v_lshlrev_b32 v71, 5, v71
    v_and_b32 v72, 1, v64
    v_lshl_add_u32 v71, v72, 4, v71
    v_add_u32 v{V_DW}, v70, v71
    s_lshl_b32 s{S_T0}, s{S_CC}, 14
    s_lshl_b32 s{S_T1}, s{S_CC}, 6
    v_lshl_add_u32 v70, v65, 11, v68
    v_xor_b32 v70, s{S_T1}, v70
    v_add_u32 v{V_DB}, s{S_T0}, v70
    s_lshl_b32 s{S_MX}, s{S_W}, 13
    s_lshl_b32 s{S_T0}, s{S_GRP}, 7
    s_lshl_b32 s{S_T1}, s{S_C}, 4
    s_add_u32 s{S_HLO}, s{S_T0}, s{S_T1}     ; p0
    s_mul_i32 s{S_T1}, s{S_GRP}, 896
    s_lshl_b32 s{S_T2}, s{S_C}, 8
    s_add_u32 s{S_HHI}, s{S_T1}, s{S_T2}     ; f0*2
    v_add_u32 v76, s{S_HLO}, v0
    v_min_u32 v76, 1023, v76
    v_lshlrev_b32 v76, 1, v76
    v_mov_b32 v{V_ZERO}, 0
    s_cmp_eq_u32 s{S_C}, 3
    s_cbranch_scc1 L1_B
    """)

def pf_setup_pre(a, typ):
    A = typ == "A"
    BIG = 0x80000000
    nBp = 4 if A else 20
    a(f"""
    v_lshlrev_b32 v73, 11, v64
    s_lshl_b32 s{S_T0}, s{S_M}, 2
    s_add_u32 s{S_T0}, s{S_T0}, s{S_C}
    s_lshl_b32 s{S_T0}, s{S_T0}, 17           ; x rows m*256 + c*64
    s_lshr_b32 s{S_T2}, s{S_M}, 1
    s_mul_i32 s{S_T2}, s{S_T2}, {nBp}
    s_add_u32 s{S_T2}, s{S_T2}, s{S_HLO}
    s_lshl_b32 s{S_T2}, s{S_T2}, 11           ; B rows
    s_mul_i32 s{S_T1}, s{S_M}, {8*7168}
    s_add_u32 s{S_T1}, s{S_T1}, s{S_HHI}      ; W rows 8m..8m+7
    """)
    if A:
        a("v_lshrrev_b32 v74, 1, v64\nv_mul_u32_u24 v74, 7168, v74\nv_and_b32 v75, 1, v64\nv_lshl_add_u32 v74, v75, 7, v74")
    else:
        a("v_mul_u32_u24 v74, 7168, v64")
    isW = f"s_sub_u32 s{S_T3}, s{S_W}, 1\ns_cmp_lt_u32 s{S_T3}, 2"
    a(f"""
    s_cmp_eq_u32 s{S_W}, 0
    s_cselect_b32 s{S_T2}, s{S_T0}, s{S_T2}
    s_cselect_b32 s{S_T0}, 64, {nBp}
    s_cselect_b32 s{S_FAST}, 2, 1
    s_lshl_b32 s{S_FAST}, s{S_FAST}, 21
    v_add_u32 v73, s{S_T2}, v73
    v_add_u32 v74, s{S_T1}, v74
    {isW}
    s_cselect_b32 s{S_FAST}, {1024*7168}, s{S_FAST}
    s_cselect_b32 s{S_T0}, {16 if A else 8}, s{S_T0}
    s_cselect_b32 s101, 3584, 1
    s_cselect_b64 vcc, -1, 0
    s_lshl_b32 s101, s101, 7
    v_cndmask_b32 v73, v73, v74, vcc
    v_cmp_gt_u32 vcc, s{S_T0}, v64
    v_mov_b32 v75, {hex(BIG)}
    s_lshl_b32 s{S_T0}, s2, 1
    v_cndmask_b32 v{V_PF}, v75, v73, vcc
    s_add_u32 s{S_T0}, s{S_T0}, s{S_W}
    s_cmp_lt_u32 s{S_W}, 2
    s_cselect_b32 s{S_T0}, s{S_T0}, s2
    s_lshl_b32 s{S_T0}, s{S_T0}, 11
    v_lshlrev_b32 v73, 7, v64
    v_add_u32 v73, s{S_T0}, v73
    v_cmp_gt_u32 vcc, 16, v64
    s_nop 1
    v_cndmask_b32 v{V_PG}, v75, v73, vcc
    """)
    return isW

def pf_setup_post(a, isW):
    a(f"""
    s_cmp_eq_u32 s{S_W}, 1
    s_cselect_b32 s{S_K0}, s{ptr(P_WG)}, s{ptr(P_WU)}
    s_cselect_b32 s{S_K0+1}, s{ptr(P_WG)+1}, s{ptr(P_WU)+1}
    s_bitcmp1_b32 s{S_M}, 0
    s_cselect_b32 s{S_K1}, s{ptr(P_BIM)}, s{ptr(P_BRE)}
    s_cselect_b32 s{S_K1+1}, s{ptr(P_BIM)+1}, s{ptr(P_BRE)+1}
    s_cmp_eq_u32 s{S_W}, 0
    s_cselect_b32 s{S_K1}, s{ptr(P_X)}, s{S_K1}
    s_cselect_b32 s{S_K1+1}, s{ptr(P_X)+1}, s{S_K1+1}
    {isW}
    s_cselect_b32 s{SRD_PF}, s{S_K0}, s{S_K1}
    s_cselect_b32 s{SRD_PF+1}, s{S_K0+1}, s{S_K1+1}
    s_mov_b32 s{SRD_PF+2}, s{S_FAST}
    s_mov_b32 s{SRD_PF+3}, 0x20000
    """)

def pg_setup_post(a):
    a(f"""
    s_cmp_eq_u32 s{S_W}, 2
    s_cselect_b32 s{S_K0}, s{ptr(P_CRE)}, s{ptr(P_CIM)}
    s_cselect_b32 s{S_K0+1}, s{ptr(P_CRE)+1}, s{ptr(P_CIM)+1}
    s_cmp_lt_u32 s{S_W}, 2
    s_cselect_b32 s{SRD_PG}, s{ptr(P_WD)}, s{S_K0}
    s_cselect_b32 s{SRD_PG+1}, s{ptr(P_WD)+1}, s{S_K0+1}
    s_cselect_b32 s{SRD_PG+2}, 7, 2
    s_cselect_b32 s{S_PGADV}, 2, 1
    s_lshl_b32 s{SRD_PG+2}, s{SRD_PG+2}, 20
    s_lshl_b32 s{S_PGADV}, s{S_PGADV}, 19
    s_mov_b32 s{SRD_PG+3}, 0x20000
    s_mov_b32 s{S_PFADV}, s101
    """)

def exp_seq(dst, src, t0, t1, k):
    hi, lo = split_const(LOG2E)
    return [f"s_mov_b32 s{k}, {hex(f2u(hi))}", f"s_mov_b32 s{k+1}, {hex(f2u(lo))}",
            f"v_mul_f32 v{t0}, s{k}, v{src}", f"v_fma_f32 v{t1}, v{src}, s{k}, -v{t0}", f"v_fma_f32 v{t1}, v{src}, s{k+1}, v{t1}",
            f"v_exp_f32 v{t0}, v{t0}", f"v_mul_f32 v{t1}, {hex(f2u(math.log(2.0)))}, v{t1}", f"v_fma_f32 v{dst}, v{t0}, v{t1}, v{t0}"]

def gate_seq():
    L = []
    for d in range(8):
        for row in range(2):
            L.append(f"v_dot2_f32_bf16 v{52+row}, v{24+8*row+d}, v{44+d}, {'0' if d == 0 else f'v{52+row}'}")
    L.append("s_nop 2")
    for dpp in ("row_shr:1", "row_shr:2", "row_shr:4", "row_shr:8"):
        L += [f"v_add_f32_dpp v{r}, v{r}, v{r} {dpp} row_mask:0xf bank_mask:0xf bound_ctrl:1" for r in (52, 53)] + ["s_nop 0"]
    L += [f"v_add_f32_dpp v{r}, v{r}, v{r} row_bcast:15 row_mask:0xa bank_mask:0xf" for r in (52, 53)] + ["s_nop 0"]
    L += [f"v_add_f32_dpp v{r}, v{r}, v{r} row_bcast:31 row_mask:0xc bank_mask:0xf" for r in (52, 53)] + ["s_nop 0"]
    L += [f"v_readlane_b32 s{S_K1}, v52, 63", f"v_readlane_b32 s{S_K1+1}, v53, 63", "s_nop 1",
          f"v_mov_b32 v52, s{S_K1}", f"v_writelane_b32 v52, s{S_K1+1}, 1",
          "v_cvt_pk_bf16_f32 v52, v52, v52", "v_and_b32 v52, 0xffff0000, v52", "v_sub_f32 v24, 0, v52",
          f"v_min_f32 v24, {hex(f2u(88.0))}, v24", f"v_max_f32 v24, {hex(f2u(-120.0))}, v24"]
    L += exp_seq(24, 24, 25, 26, S_K1)
    L += ["v_add_f32 v24, 1.0, v24", "v_rcp_f32 v25, v24", "s_nop 0", "v_fma_f32 v26, -v24, v25, 1.0", "v_fma_f32 v25, v25, v26, v25",
          "v_cvt_pk_bf16_f32 v52, v25, v25", "v_and_b32 v52, 0xffff0000, v52"]
    return L

def params_seq(typ):
    NP = 16 if typ == "A" else 80
    k = S_K1
    R = 28
    L = ["v_lshlrev_b32 v40, 16, v40", "v_lshlrev_b32 v41, 16, v41", "v_lshlrev_b32 v42, 16, v42"]
    L += exp_seq(36, 42, 44, 45, k)
    L += ["v_cvt_pk_bf16_f32 v36, v36, v36", "v_and_b32 v36, 0xffff0000, v36", "v_mul_f32 v46, v36, v40", "v_mul_f32 v47, v36, v41"]
    L += exp_seq(46, 46, 44, 45, k)[2:]
    hi, lo = split_const(1.0/(2*math.pi))
    L += f"""s_mov_b32 s{k}, {hex(f2u(hi))}
s_mov_b32 s{k+1}, {hex(f2u(lo))}
v_mul_f32 v44, s{k}, v47
v_fma_f32 v45, v47, s{k}, -v44
v_fma_f32 v45, v47, s{k+1}, v45
v_rndne_f32 v48, v44
v_sub_f32 v44, v44, v48
v_add_f32 v44, v44, v45
v_cos_f32 v48, v44
v_sin_f32 v49, v44
v_mul_f32 v45, v40, v40
v_mul_f32 v{R}, v46, v48
v_mul_f32 v{R+1}, v46, v49
v_fma_f32 v45, v41, v41, v45
v_add_f32 v44, -1.0, v{R}
v_rcp_f32 v48, v45
v_mul_f32 v{R+2}, v44, v40
v_fma_f32 v49, -v45, v48, 1.0
v_fma_f32 v48, v48, v49, v48
v_fma_f32 v{R+2}, v{R+1}, v41, v{R+2}
v_mul_f32 v{R+3}, v{R+1}, v40
v_fma_f32 v{R+3}, -v44, v41, v{R+3}
v_mul_f32 v{R+2}, v{R+2}, v48
v_mul_f32 v{R+3}, v{R+3}, v48""".split("\n")
    def csq(dr, di, sr, si, t):
        return [f"v_mul_f32 v{t}, v{si}, v{si}", f"v_mul_f32 v{di}, v{sr}, v{si}", f"v_fma_f32 v{dr}, v{sr}, v{sr}, -v{t}", f"v_add_f32 v{di}, v{di}, v{di}"]
    L += csq(R+4, R+5, R, R+1, 44)
    for _ in range(3): L += csq(R+4, R+5, R+4, R+5, 44)
    L += csq(R+6, R+7, R+4, R+5, 44)
    for _ in range(3): L += csq(R+6, R+7, R+6, R+7, 44)
    L += [f"v_cmp_gt_u32 vcc, {NP}, v0", "v_mov_b32 v36, 0x8000", "s_nop 0", "v_cndmask_b32 v36, v36, v0, vcc",
          "v_lshlrev_b32 v44, 5, v36", f"v_add_u32 v44, {LDS_PT}, v44",
          f"ds_write_b128 v44, v[{R}:{R+3}]", f"ds_write_b128 v44, v[{R+4}:{R+7}] offset:16"]
    def reloc(t):
        t = re.sub(r"v\[(\d+):(\d+)\]", lambda m_: f"v[{int(m_.group(1))+60}:{int(m_.group(2))+60}]", t)
        return re.sub(r"\bv(\d+)\b", lambda m_: m_.group(0) if m_.group(1) == "0" else f"v{int(m_.group(1))+60}", t)
    return [reloc(t) for t in L]

def chain_items(seq, lo, hi, name):
    out = []
    for t in seq:
        if isinstance(t, tuple): out.append(Item("ds", t[1], lo, hi, None, chain=name, cost=8))
        else:
            c = 8 if any(t.startswith(x) for x in ("v_exp", "v_rcp", "v_sin", "v_cos")) or "\n" in t else 4
            out.append(Item("v", t, lo, hi, chain=name, cost=c))
    return out

def p1_type(a, typ, opt):
    P = P1(typ, opt)
    A = typ == "A"
    L = f"L1{typ}"
    isW = pf_setup_pre(a, typ)
    a(f"""
    s_lshl_b32 s{S_T0}, s{S_M}, 2
    s_add_u32 s{S_T0}, s{S_T0}, s{S_W}
    s_lshl_b32 s{S_T0}, s{S_T0}, 17          ; x
    s_lshl_b32 s{S_T1}, s{S_HLO}, 11         ; B
    """)
    if A:
        a(f"""
    s_lshl_b32 s{S_T2}, s{S_CC}, 7
    s_lshl_b32 s{S_MW}, s{S_W}, 13
    s_lshl_b32 s{S_MB}, s{S_W}, 10
    s_add_u32 s{S_MB}, s{S_MB}, 131072
    """)
    else:
        a(f"""
    s_mul_i32 s{S_T2}, s{S_CC}, {32*7168}
    s_lshl_b32 s{S_MW}, s{S_W}, 12
    s_mul_i32 s{S_MB}, s{S_W}, 5120
    s_add_u32 s{S_MB}, s{S_MB}, 98304
    """)
    a(f"""
    s_add_u32 s{S_MW}, s{S_MW}, 65536
    s_add_u32 s{S_T2}, s{S_T2}, s{S_HHI}     ; W
    s_lshl_b32 s{S_CNT}, s{S_M}, 5
    s_add_u32 s{S_CNT}, s{S_CNT}, s{S_N}
    s_lshl_b32 s{S_CNT}, s{S_CNT}, 2
    s_add_u32 s{S_CNT}, s{S_CNT}, s{S_W}
    s_lshl_b32 s{S_CNT}, s{S_CNT}, 1
    s_lshl_b32 s{S_T3}, s{S_CNT}, 11
    s_mov_b32 s{SRD_T+2}, 2048
    s_waitcnt lgkmcnt(0)
    """)
    stamp(a, opt, 23)
    a(f"""
    s_mov_b32 s{SRD_T}, s{ptr(P_LRE)}
    s_mov_b32 s{SRD_T+1}, s{ptr(P_LRE)+1}
    buffer_load_ushort v100, v76, s[{SRD_T}:{SRD_T+3}], 0 offen
    s_mov_b32 s{SRD_T}, s{ptr(P_LIM)}
    s_mov_b32 s{SRD_T+1}, s{ptr(P_LIM)+1}
    buffer_load_ushort v101, v76, s[{SRD_T}:{SRD_T+3}], 0 offen
    s_mov_b32 s{SRD_T}, s{ptr(P_LDT)}
    s_mov_b32 s{SRD_T+1}, s{ptr(P_LDT)+1}
    buffer_load_ushort v102, v76, s[{SRD_T}:{SRD_T+3}], 0 offen
    s_cmp_eq_u32 s{S_RH}, 0
    s_cselect_b32 s{SRD_W}, s{ptr(P_WG)}, s{ptr(P_WU)}
    s_cselect_b32 s{SRD_W+1}, s{ptr(P_WG)+1}, s{ptr(P_WU)+1}
    s_cselect_b32 s{SRD_B}, s{ptr(P_BRE)}, s{ptr(P_BIM)}
    s_cselect_b32 s{SRD_B+1}, s{ptr(P_BRE)+1}, s{ptr(P_BIM)+1}
    """)
    ntl = 0
    if opt.get("tlb", 0):
        a(f"v_lshlrev_b32 v78, 17, v{V_LANE16}")
        for p_, off, size in ((P_LRE, 0, 2048), (P_LIM, 0, 2048), (P_LDT, 0, 2048), (P_GW, 0, 2048), (P_DSK, 0, 2048), (P_WD, 0, 3584*2048),
                              (P_CRE, 0, 1 << 21), (P_CIM, 0, 1 << 21), (P_WS, 0, WS_XBUF + (4 << 20)), (P_OUT, 0, 8 << 20),
                              (P_WG, 0, 1024*7168), (P_WU, 0, 1024*7168)):
            a(f"s_mov_b32 s{SRD_T}, s{ptr(p_)}"); a(f"s_mov_b32 s{SRD_T+1}, s{ptr(p_)+1}"); a(f"s_mov_b32 s{SRD_T+2}, {size}")
            a(f"buffer_load_dword v{V_PD}, v78, s[{SRD_T}:{SRD_T+3}], 0 offen")
        a(f"s_mov_b32 s{SRD_T+2}, 2048")
    pf_setup_post(a, isW.replace(f"s{S_T3}", f"s{S_NONCE}"))
    pf = P.pf_list()
    PD = opt.get("pd", 3)
    pfadv = f"v_add_u32 v{V_PF}, s101, v{V_PF}"
    if opt.get("pf0all", 1): a(pf[0])
    else:
        a(f"s_cbranch_scc1 {L}_nopf0")
        a(pf[0])
        a(f"{L}_nopf0:")
    a(pfadv)
    dl = P.dma_list(0)
    nW = 8 if A else 4
    order = {"W": (SRD_W, SRD_W, S_T2, dl[8:8+nW]), "B": (SRD_B, SRD_B, S_T1, dl[8+nW:]), "X": (SRD_X, ptr(P_X), S_T0, dl[:8])}
    for key in opt.get("dma_order", "WBX"):
        srd, base, off, lst = order[key]
        a(f"s_add_u32 s{srd}, s{base}, s{off}"); a(f"s_addc_u32 s{srd+1}, s{base+1}, 0")
        a(f"s_sub_u32 s{srd}, s{srd}, 3072"); a(f"s_subb_u32 s{srd+1}, s{srd+1}, 0")
        for pre, ld in lst:
            for t in pre:
                a(t); a("s_nop 0")
            a(ld)
    a(pf[0]); a(pfadv)
    a(f"""
    s_add_u32 s{SRD_T}, s{ptr(P_WS)}, {WS_EPOCH}
    s_addc_u32 s{SRD_T+1}, s{ptr(P_WS)+1}, 0
    buffer_load_dword v{V_EPO}, v{V_ZERO}, s[{SRD_T}:{SRD_T+3}], 0 offen sc1
    s_mov_b32 s{SRD_T}, s{ptr(P_GW)}
    s_mov_b32 s{SRD_T+1}, s{ptr(P_GW)+1}
    buffer_load_dwordx4 v[44:47], v{V_LANE16}, s[{SRD_T}:{SRD_T+3}], 0 offen
    buffer_load_dwordx4 v[48:51], v{V_LANE16}, s[{SRD_T}:{SRD_T+3}], 0 offen offset:1024
    s_add_u32 s{SRD_T}, s{ptr(P_X)}, s{S_T3}
    s_addc_u32 s{SRD_T+1}, s{ptr(P_X)+1}, 0
    s_mov_b32 s{SRD_T+2}, 4096
    buffer_load_dwordx4 v[24:27], v{V_LANE16}, s[{SRD_T}:{SRD_T+3}], 0 offen
    buffer_load_dwordx4 v[28:31], v{V_LANE16}, s[{SRD_T}:{SRD_T+3}], 0 offen offset:1024
    buffer_load_dwordx4 v[32:35], v{V_LANE16}, s[{SRD_T}:{SRD_T+3}], 0 offen offset:2048
    buffer_load_dwordx4 v[36:39], v{V_LANE16}, s[{SRD_T}:{SRD_T+3}], 0 offen offset:3072
    """)
    for k in range(PD - 2): a(pf[0]); a(pfadv)
    pg_setup_post(a)
    stamp(a, opt, 1)
    blk = f"""
    v_and_b32 v70, 15, v64
    v_lshrrev_b32 v71, 1, v70
    v_xor_b32 v71, v71, v67
    v_lshlrev_b32 v71, 4, v71
    v_lshl_add_u32 v72, v70, 7, v71
    s_lshl_b32 s{S_T0}, s{S_RH}, 14
    s_lshl_b32 s{S_T1}, s{S_CC}, 13
    s_add_u32 s{S_T2}, s{S_T0}, s{S_T1}
    s_xor_b32 s{S_T3}, s{S_T2}, 8192
    v_add_u32 v{V_AX+0}, s{S_T2}, v72
    v_add_u32 v{V_AX+1}, s{S_T3}, v72
    v_xor_b32 v{V_AX+2}, 64, v{V_AX+0}
    v_xor_b32 v{V_AX+3}, 64, v{V_AX+1}
    v_bfe_u32 v73, v64, 2, 2
    v_lshrrev_b32 v74, 5, v64
    v_lshlrev_b32 v74, 4, v74
    v_lshl_add_u32 v74, v73, 1, v74
    v_and_b32 v75, 1, v67
    v_add_u32 v74, v74, v75
    v_lshlrev_b32 v74, 7, v74
    v_and_b32 v75, 3, v64
    v_lshl_add_u32 v74, v75, 3, v74
    """
    a(blk)
    if A:
        a(f"s_lshl_b32 s{S_T0}, s{S_CC}, 13")
        a(f"s_add_u32 s{S_T0}, s{S_T0}, 65536")
        for f in range(4):
            a(f"v_xor_b32 v75, {f}, v73")
            a(f"v_lshl_add_u32 v75, v75, 5, v74")
            a(f"v_add_u32 v{V_AW+f}, s{S_T0}, v75")
        a(f"v_add_u32 v{V_AB}, 131072, v72")
        a(f"v_xor_b32 v{V_AB+1}, 64, v{V_AB}")
    else:
        a(f"s_lshl_b32 s{S_T0}, s{S_CC}, 1")
        for f in range(2):
            a(f"v_xor_b32 v75, s{S_T0}, v73")
            if f: a(f"v_xor_b32 v75, 1, v75")
            a(f"v_lshl_add_u32 v75, v75, 5, v74")
            a(f"v_add_u32 v{V_AW+f}, 65536, v75")
        a(f"""
    v_lshrrev_b32 v75, 3, v70
    v_mul_u32_u24 v75, 5120, v75
    v_and_b32 v77, 7, v70
    v_lshl_add_u32 v75, v77, 7, v75
    v_add_u32 v75, v75, v71
    v_add_u32 v{V_AB}, 98304, v75
    v_xor_b32 v{V_AB+1}, 64, v{V_AB}
    s_lshl_b32 s{S_T0}, s{S_CC}, 11
    v_add_u32 v{V_AB+2}, s{S_T0}, v{V_AB}
    v_add_u32 v{V_AB+3}, s{S_T0}, v{V_AB+1}
    """)
    a(f"""
    s_lshl_b32 s{S_K0}, s{S_CNT}, 3
    s_add_u32 s{SRD_T}, s{ptr(P_WS)}, {WS_GATE}
    s_addc_u32 s{SRD_T+1}, s{ptr(P_WS)+1}, 0
    s_mov_b32 s{SRD_T+2}, {WS_XFLG - WS_GATE}
    """)
    stamp(a, opt, 3)
    for _ in range(opt.get("diag_sleep1", 0)): a("s_sleep 100")
    a(f"s_cmp_lt_u32 s{S_W}, {1 if A else 2}")
    a(f"s_cbranch_scc0 {L}_nopar")
    a(f"s_waitcnt vmcnt({17 + 7 + PD - 1})")
    for t in params_seq(typ): a(t)
    a(f"{L}_nopar:")
    a(f"s_waitcnt vmcnt({7 + PD - 1}) lgkmcnt(0)")
    a("s_barrier")
    stamp(a, opt, 4)
    if opt.get("p1_nodma"):
        for r in (SRD_X+2, SRD_W+2, SRD_B+2): a(f"s_mov_b32 s{r}, 0")
    if opt.get("p1_nopf"):
        for r in (SRD_PF+2, SRD_PG+2): a(f"s_mov_b32 s{r}, 0")
    if opt.get("p1_nopg"): a(f"s_mov_b32 s{SRD_PG+2}, 0")
    def pfx(pos): return [Item("vm", pf[0], pos, pos), Item("v", pf[1], pos+1, pos+6), Item("vm", pf[2], pos+3, pos+3), Item("v", pf[3], pos+4, pos+8)]
    ppos = opt.get("dma0", 13) + int(16*opt.get("dmastep", 4)) + 3
    assert ppos + 8 < 118
    wpos = opt.get("gate_pos", 74)
    ndma = sum(1 for k in range(17) if opt.get("dma0", 13) + int(k*opt.get("dmastep", 4)) < wpos)
    gseq = [f"s_waitcnt vmcnt({PD - 2 + ndma})", f"v_readfirstlane_b32 s{S_NONCE}, v{V_EPO}"] + gate_seq() + [
        f"s_add_u32 s{S_NONCE}, s{S_NONCE}, 1", f"v_mov_b32 v53, s{S_NONCE}", f"v_lshrrev_b32 v39, 1, v{V_LANE16}"]
    if opt.get("diag_nogate"): gseq = gseq[:2] + gseq[-3:]
    git = chain_items(gseq, wpos, 117, "gate"); git[0].hi = wpos
    first_extra = pfx(ppos) + git + [Item("s", "s_mov_b64 exec, 3\n"
        f"buffer_store_dwordx2 v[52:53], v39, s[{SRD_T}:{SRD_T+3}], s{S_K0} offen sc0 sc1\n"
        "s_mov_b64 exec, -1\ns_nop 1", 118, 118, cost=30)]
    if opt.get("iterst"):
        a(f"s_memrealtime s[30:31]"); a("s_waitcnt lgkmcnt(0)")
    P.body(a, 0, first=True, dma=True, extra=first_extra, endwait="vmcnt(3)")
    if opt.get("iterst"):
        a(f"s_memrealtime s[{S_ST}:{S_ST+1}]"); a("s_waitcnt lgkmcnt(0)"); a(f"v_writelane_b32 v39, s30, 0"); a(f"v_writelane_b32 v39, s{S_ST}, 1"); a(f"s_memtime s[{S_ST}:{S_ST+1}]"); a("s_waitcnt lgkmcnt(0)"); a(f"v_writelane_b32 v39, s{S_ST}, 17")
    a(f"s_mov_b32 s{S_CNT}, 7")
    a(".p2align 3")
    a(f"{L}_loop:")
    sk = not opt.get("p1_skipdma")
    dr = opt.get("diag_ramp")
    rx = []
    if dr:
        for p_ in range(4, 140, dr[2]):
            rx.append(Item("s", f"s_cmp_gt_u32 s{S_CNT}, {dr[0]}\ns_cbranch_scc0 {L}_r{p_}\ns_nop {dr[1]}\n{L}_r{p_}:", p_, p_ + 3, cost=8))
    P.body(a, 1, dma=sk, extra=pfx(ppos) + rx, endwait="vmcnt(2)")
    P.body(a, 0, dma=sk, extra=pfx(ppos) + [Item("s", f"s_sub_u32 s{S_CNT}, s{S_CNT}, 1", 60, 130)], endwait="vmcnt(2)")
    if opt.get("iterst"):
        a(f"s_memrealtime s[{S_ST}:{S_ST+1}]"); a(f"s_sub_u32 m0, 8, s{S_CNT}"); a("s_waitcnt lgkmcnt(0)"); a(f"v_writelane_b32 v39, s{S_ST}, m0"); a(f"s_memtime s[{S_ST}:{S_ST+1}]"); a("s_add_u32 m0, m0, 16"); a("s_waitcnt lgkmcnt(0)"); a(f"v_writelane_b32 v39, s{S_ST}, m0")
    a(f"s_cmp_lg_u32 s{S_CNT}, 0")
    a(f"s_cbranch_scc1 {L}_loop")
    if opt.get("iterst"):
        add64(a, SRD_T, ptr(P_WS), WS_STAMP + 0x80000)
        a(f"s_mov_b32 s{SRD_T+2}, 0x40000\ns_lshl_b32 s{S_T0}, s2, 2\ns_add_u32 s{S_T0}, s{S_T0}, s{S_W}\ns_lshl_b32 s{S_T0}, s{S_T0}, 8\nv_lshrrev_b32 v38, 2, v{V_LANE16}")
        a(f"buffer_store_dword v39, v38, s[{SRD_T}:{SRD_T+3}], s{S_T0} offen")
    cp = []
    if not opt.get("nocpf"):
        for k, tgt in enumerate((f"L1{typ}_epi", "L2_start")):
            cp.append(Item("s", f"s_getpc_b64 s[{S_K0}:{S_K0+1}]\n{L}_pc{k}:\ns_add_u32 s{S_K0}, s{S_K0}, {tgt}-{L}_pc{k}\ns_addc_u32 s{S_K0+1}, s{S_K0+1}, 0\n"
                           f"global_load_dword v{V_PD}, v{V_CPF}, s[{S_K0}:{S_K0+1}]", 14 + 6*k, 14 + 6*k, cost=25))
    cp.append(Item("s", f"""s_bfe_u32 s{S_T0}, s2, 0x10001
s_lshl_b32 s{S_T0}, s{S_T0}, 3
s_add_u32 s{S2_RB}, s{S_T0}, s{S_M}
s_and_b32 s{S_T0}, s2, 4
s_add_u32 s{S2_DB}, s{S_T0}, s{S_C}""", 30, 34, cost=20, chain="ib"))
    cp.append(Item("s", f"""s_lshl_b32 s{S_T0}, s{S2_RB}, 3
s_add_u32 s{S_T0}, s{S_T0}, s{S2_DB}
s_lshl_b32 s{S_T0}, s{S_T0}, 1
s_add_u32 s{S_T0}, s{S_T0}, s{S_KI}""", 36, 40, cost=16, chain="ib"))
    cp.append(Item("s", f"""s_lshl_b32 s{S_T0}, s{S_T0}, 2
s_add_u32 s{S_SLOT}, s{S_T0}, s{S_W}
s_xor_b32 s{S_T0}, s{S_SLOT}, 4
s_lshl_b32 s{S_T0}, s{S_T0}, 12""", 42, 46, cost=16, chain="ib"))
    cp.append(Item("s", f"""s_add_u32 s{SRD_T}, s{ptr(P_WS)}, {WS_XBUF}
s_addc_u32 s{SRD_T+1}, s{ptr(P_WS)+1}, 0
s_mov_b32 s{SRD_T+2}, {1024*4096}""", 48, 52, cost=12, chain="ib"))
    for r in range(4): cp.append(Item("v", f"v_mov_b32 v{24+r}, -1", 30, 52))
    for k in range(4):
        cp.append(Item("vm", f"buffer_store_dwordx4 v[24:27], v{V_LANE16}, s[{SRD_T}:{SRD_T+3}], s{S_T0} offen offset:{1024*k} sc0 sc1", 56 + 6*k, 56 + 6*k))
    early = p2_early_dma(opt.get('wdma',''))
    cp += chain_items(p2_dma_setup_seq(), 48, 84, "p2s")
    for k in range(8):
        g_ = [t for t in early.pop(0) if t != "s_nop 0"]
        p_ = 88 + 5*k
        if len(g_) > 1: cp.append(Item("s", "\n".join(g_[:-1]), p_ - 1, p_ - 1))
        cp.append(Item("vm", g_[-1], p_, p_))
    P.body(a, 1, dma=False, barrier=True, endwait="vmcnt(8)", extra=cp)
    a(f"""
    s_add_u32 s{SRD_T}, s{ptr(P_WS)}, {WS_XFLG}
    s_addc_u32 s{SRD_T+1}, s{ptr(P_WS)+1}, 0
    s_mov_b32 s{SRD_T+2}, {1024*64}
    s_lshl_b32 s{S_T0}, s{S_SLOT}, 6
    v_mov_b32 v52, v53
    s_mov_b64 exec, 1
    buffer_store_dwordx2 v[52:53], v{V_ZERO}, s[{SRD_T}:{SRD_T+3}], s{S_T0} offen sc0 sc1
    s_mov_b64 exec, -1
    """)
    load_ptrs(a)
    ntail = opt.get("tail_dma", 0)
    k_ = 0
    for gi_ in (17, 18, 19):
        for t, _ in P.group_mfmas(gi_, False):
            a(t)
            k_ += 1
            if k_ % 3 == 1 and ntail:
                for t2 in early.pop(0): a(t2)
                ntail -= 1
    P.early = early
    stamp(a, opt, 5)
    a(f"s_branch {L}_epi")
    return P

def p2_dma_setup_seq():
    L = [l.split(";")[0].strip() for l in f"""
    ; Wd + (ki*1792 + 64*(w&1))*2048 + (db*128 + 64*((w>>1)^ki))*2 - 3072
    s_mul_i32 s{S_K1}, s{S_KI}, 28
    s_add_u32 s{S_K1}, s{S_K1}, s{S_CC}
    s_lshl_b32 s{S_K1}, s{S_K1}, 17
    s_xor_b32 s{S_K1+1}, s{S_RH}, s{S_KI}
    s_lshl_b32 s{S_FLG}, s{S2_DB}, 1
    s_add_u32 s{S_K1+1}, s{S_K1+1}, s{S_FLG}
    s_lshl_b32 s{S_K1+1}, s{S_K1+1}, 7
    s_add_u32 s{S_K1}, s{S_K1}, s{S_K1+1}
    s_add_u32 s{SRD_WT}, s{ptr(P_WD)}, s{S_K1}
    s_addc_u32 s{SRD_WT+1}, s{ptr(P_WD)+1}, 0
    s_sub_u32 s{SRD_WT}, s{SRD_WT}, 3072
    s_subb_u32 s{SRD_WT+1}, s{SRD_WT+1}, 0
    s_mov_b32 s{SRD_WT+2}, {64*2048 + 3072}
    s_mov_b32 s{S2_ADV}, {128*2048}
    s_lshl_b32 s{S2_MW}, s{S_W}, 13
    v_lshrrev_b32 v28, 4, v{V_LANE16}     ; lane
    v_lshrrev_b32 v29, 4, v28              ; q
    v_bfe_u32 v30, v28, 3, 1
    v_lshl_add_u32 v30, v30, 2, v29
    v_bfe_u32 v31, v28, 1, 2
    v_xor_b32 v31, v31, v29
    v_lshlrev_b32 v31, 5, v31
    v_and_b32 v28, 1, v28
    v_lshl_add_u32 v31, v28, 4, v31
    v_lshl_add_u32 v0, v30, 11, v31
    """.split("\n")]
    L = [l for l in L if l]
    out = []
    for l in L:
        if l.startswith(("s_addc", "s_subb")): out[-1] += "\n" + l
        else: out.append(l)
    return out + [f"s_mov_b32 s{S2_OW+i}, {8*i*2048 + 3072 - 1024*(i&3)}" for i in range(8)]

def p2_early_dma(fl=''):
    out = []
    for st in range(3):
        for i in range(8):
            g = []
            if i == 0 and st > 0:
                g += [f"s_add_u32 s{SRD_WT}, s{SRD_WT}, s{S2_ADV}", f"s_addc_u32 s{SRD_WT+1}, s{SRD_WT+1}, 0"]
            if i % 4 == 0: g += [f"s_add_u32 m0, s{S2_MW}, {st*32768 + (i//4)*4096}", "s_nop 0"]
            g.append(f"buffer_load_dwordx4 v0, s[{SRD_WT}:{SRD_WT+3}], s{S2_OW+i} offen offset:{1024*(i&3)} {fl} lds")
            out.append(g)
    return out

def p1_epilogue(a, P, opt):
    typ = P.typ; A = typ == "A"; L = f"L1{typ}"
    T = V_TMP
    units = [("H", 0 if A else 4, 0)] + ([] if A else [("S", 0, 0), ("S", 0, 4), ("S", 1, 0), ("S", 1, 4)])
    nu = len(units)
    VP, VU0, VH, VA = T, T + 12, T + 20, T + 30
    SRD_HH = SRD_W
    a(f"v_lshrrev_b32 v{VA}, 4, v{V_LANE16}")
    a(f"v_and_b32 v{VA+1}, 15, v{VA}")
    a(f"v_lshlrev_b32 v{VA+2}, 5, v{VA+1}")
    a(f"v_add_u32 v{VA+2}, {LDS_PT}, v{VA+2}")
    if A:
        a(f"ds_read_b128 v[{VP}:{VP+3}], v{VA+2}")
        pblk = {0: VP}
    else:
        a(f"ds_read_b128 v[{VP}:{VP+3}], v{VA+2} offset:{4*512}")
        a(f"s_lshl_b32 s{S_T0}, s{S_CC}, 10")
        a(f"v_add_u32 v{VA+2}, s{S_T0}, v{VA+2}")
        a(f"ds_read_b128 v[{VP+4}:{VP+7}], v{VA+2}")
        a(f"ds_read_b128 v[{VP+8}:{VP+11}], v{VA+2} offset:512")
        pblk = {0: VP, 1: VP+4, 2: VP+4, 3: VP+8, 4: VP+8}
    a(f"""
    v_lshrrev_b32 v{VA}, 4, v{VA}
    v_lshlrev_b32 v{VA}, 7, v{VA}
    v_lshl_add_u32 v{VA}, v{VA+1}, 3, v{VA}
    s_lshl_b32 s{S_T0}, s{S_RH}, 10
    s_lshl_b32 s{S_T1}, s{S_CC}, 9
    s_add_u32 s{S_T0}, s{S_T0}, s{S_T1}
    s_add_u32 s{S_T0}, s{S_T0}, {LDS_F}
    s_xor_b32 s{S_T1}, s{S_T0}, 512
    s_lshl_b32 s{S_T2}, s{S_CC}, 12
    v_add_u32 v{VA+1}, s{S_T0}, v{VA}
    s_add_u32 s{S_T0}, s{S_T0}, s{S_T2}
    s_add_u32 s{S_T1}, s{S_T1}, s{S_T2}
    v_add_u32 v{VA+2}, s{S_T0}, v{VA}
    v_add_u32 v{VA+3}, s{S_T1}, v{VA}
    s_waitcnt lgkmcnt(0)
    """)
    def faddr(ui):
        kind, idx, jj0 = units[ui]
        if kind == "H": return VA+1, idx*2048
        return (VA+2 if jj0 == 0 else VA+3), idx*2048
    ublk = {}
    free = VU0
    for ui, (kind, idx, jj0) in enumerate(units):
        pp = pblk[ui]
        for b in range(4):
            R = P.tile[(kind, idx, 0, jj0 + b)][1]
            for r in range(4):
                a(f"v_pk_mul_f32 v[{free+2*r}:{free+2*r+1}], v[{pp+2}:{pp+3}], v[{R+(r&2)}:{R+(r&2)+1}] op_sel:[0,{r&1}] op_sel_hi:[1,{r&1}]")
            for r in range(4):
                a(f"v_pk_fma_f32 v[{free+2*r}:{free+2*r+1}], v[{pp+2}:{pp+3}], v[{R+4+(r&2)}:{R+4+(r&2)+1}], v[{free+2*r}:{free+2*r+1}] op_sel:[1,{r&1},0] op_sel_hi:[0,{r&1},1] neg_lo:[1,0,0]")
            ublk[(ui, b)] = free
            free = R
    SP = free
    def ureg(ui, s): return ublk[(ui, s >> 2)] + 2*(s & 3)
    tmps = [SP, SP+2, SP+4, SP+6, V_EPO]
    for s in range(1, 16):
        hs = [ureg(ui, 0) if s == 1 else VH + 2*ui for ui in range(nu)]
        for ui in range(nu): a(cstep1(tmps[ui], hs[ui], ureg(ui, s), pblk[ui]))
        for ui in range(nu): a(cstep2(VH + 2*ui, hs[ui], tmps[ui], pblk[ui]))
    for ui in range(nu):
        va, off = faddr(ui)
        a(f"ds_write_b64 v{va}, v[{VH+2*ui}:{VH+2*ui+1}] offset:{off}")
    a("s_waitcnt lgkmcnt(0)")
    a("s_barrier")
    stamp(a, opt, 6)
    nscan = 1 if A else 2
    VS = VH
    a(f"v_lshrrev_b32 v{VS+8}, 4, v{V_LANE16}")
    if A:
        a(f"v_and_b32 v{VS+8}, 15, v{VS+8}")
    else:
        a(f"s_lshl_b32 s{S_T0}, s{S_CC}, 6")
        a(f"v_add_u32 v{VS+8}, s{S_T0}, v{VS+8}")
        a(f"v_min_u32 v{VS+8}, 79, v{VS+8}")
    a(f"""
    v_lshlrev_b32 v{VS+9}, 5, v{VS+8}
    v_add_u32 v{VS+9}, {LDS_PT}, v{VS+9}
    ds_read_b128 v[{VS}:{VS+3}], v{VS+9} offset:16
    s_lshl_b32 s{S_T0}, s{S_GRP}, 7
    s_lshl_b32 s{S_T1}, s{S_C}, 4
    s_add_u32 s{S_T0}, s{S_T0}, s{S_T1}
    v_add_u32 v{VS+7}, s{S_T0}, v{VS+8}
    v_lshlrev_b32 v{VS+7}, 4, v{VS+7}
    s_add_u32 s{SRD_T}, s{ptr(P_WS)}, {WS_GRAN}
    s_addc_u32 s{SRD_T+1}, s{ptr(P_WS)+1}, 0
    s_mov_b32 s{SRD_T+2}, {8*16384}
    s_cmp_lt_u32 s{S_W}, {nscan}
    s_cbranch_scc0 {L}_e2d
    v_lshrrev_b32 v{VS+6}, 4, v{VS+8}
    v_lshlrev_b32 v{VS+6}, 11, v{VS+6}
    v_and_b32 v{VS+9}, 15, v{VS+8}
    v_lshl_add_u32 v{VS+6}, v{VS+9}, 3, v{VS+6}
    v_add_u32 v{VS+6}, {LDS_F}, v{VS+6}
    v_mov_b32 v{VS+4}, 0
    v_mov_b32 v{VS+5}, 0
    v_lshlrev_b32 v2, 3, v{VS+8}
    v_add_u32 v2, {LDS_PW}, v2
    v_mov_b32 v4, 1.0
    v_mov_b32 v5, 0
    v_mov_b32 v8, 0
    v_mov_b32 v9, 0
    """)
    for s0 in range(0, 16, 4):
        for k in range(4):
            a(f"ds_read_b64 v[{SP+2*k}:{SP+2*k+1}], v{VS+6} offset:{(s0+k)*128}")
        for k in range(4):
            a(f"s_waitcnt lgkmcnt({3 + k})")
            a(f"ds_write_b64 v{VS+6}, v[{VS+4}:{VS+5}] offset:{(s0+k)*128}")
            a(f"ds_write_b64 v2, v[4:5] offset:{(s0+k)*640}")
            a(cstep1(VS+8, VS+4, SP+2*k, VS)); a(cstep1(6, 4, 8, VS))
            a(cstep2(VS+4, VS+4, VS+8, VS)); a(cstep2(4, 4, 6, VS))
    a(f"""
    s_lshl_b32 s{S_T0}, s{S_M}, 14
    v_mov_b32 v{SP}, v{VS+4}
    v_mov_b32 v{SP+1}, s{S_NONCE}
    v_mov_b32 v{SP+2}, v{VS+5}
    v_mov_b32 v{SP+3}, s{S_NONCE}
    """)
    if A: a("s_mov_b64 exec, 0xffff")
    else:
        a(f"s_cmp_eq_u32 s{S_W}, 0")
        a("s_cselect_b64 exec, -1, 0xffff")
    a(f"buffer_store_dwordx4 v[{SP}:{SP+3}], v{VS+7}, s[{SRD_T}:{SRD_T+3}], s{S_T0} offen sc0 sc1")
    a("s_mov_b64 exec, -1")
    a(f"{L}_e2d:")
    a(f"s_sub_u32 s{S_T0}, s{S_M}, 7")
    a(f"s_lshl_b32 s{S_T0}, s{S_T0}, 14")
    a(f"v_add_u32 v{VS+7}, s{S_T0}, v{VS+7}")
    a(f"s_mov_b32 s{S_K0}, {hex(f2u(GELU_C1))}"); a(f"s_mov_b32 s{S_K0+1}, {hex(f2u(GELU_C1))}")
    a(f"s_mov_b32 s{S_K1}, 1.0"); a(f"s_mov_b32 s{S_K1+1}, 1.0")
    a(f"v_mov_b32 v{V_EPO}, {hex(f2u(GELU_C0))}"); a(f"v_mov_b32 v{V_EPO+1}, {hex(f2u(GELU_C0))}")
    a(f"""
    s_lshl_b32 s{S_T0}, s{S_M}, 1
    s_add_u32 s{S_T0}, s{S_T0}, s{S_RH}
    s_mul_i32 s{S_T0}, s{S_T0}, {8*NKB*1024}
    s_add_u32 s{SRD_HH}, s{ptr(P_WS)}, s{S_T0}
    s_addc_u32 s{SRD_HH+1}, s{ptr(P_WS)+1}, 0
    s_mov_b32 s{SRD_HH+2}, {8*NKB*1024}
    s_mul_i32 s{S_HLO}, s{S_CC}, {4*NKB*1024}
    s_sub_u32 s{S_HHI}, {4*NKB*1024}, s{S_HLO}
    s_mul_i32 s{S_T0}, s{S_GRP}, 14
    s_lshl_b32 s{S_T1}, s{S_C}, 2
    s_add_u32 s{S_T0}, s{S_T0}, s{S_T1}
    s_lshl_b32 s{S_T1}, s{S_CC}, {1 if A else 0}
    s_add_u32 s{S_T0}, s{S_T0}, s{S_T1}
    s_lshl_b32 s{S_T0}, s{S_T0}, 10
    s_add_u32 s{S_T2}, s{S_HLO}, s{S_T0}
    s_add_u32 s{S_T3}, s{S_HHI}, s{S_T0}
    """)
    stflag = opt.get("hstore", "sc0 sc1")
    TT = 2
    mimic = opt.get("mimic", False)
    freed = [10, 14]
    early = P.early
    if opt.get("diag_nostore"): a(f"s_mov_b32 s{SRD_HH+2}, 0")
    ng = 16 if A else 8
    gi = 0
    poll_at = opt.get("poll_at_" + typ, ng - (4 if A else 2))
    pollregs = []
    vm_after_poll = None
    def poll_issue():
        for j in range(7):
            d = pollregs[j]
            a(f"v_add_u32 v{VS+8}, {j*16384}, v{VS+7}")
            a(f"buffer_load_dwordx4 v[{d}:{d+3}], v{VS+8}, s[{SRD_T}:{SRD_T+3}], 0 offen sc0 sc1")
    for jj in range(8):
        for i in range(2 if A else 1):
            if gi == poll_at:
                low = [r for r in freed if r < 240][:8]
                for r in low: freed.remove(r)
                pollregs = low[:7]
                a(f"s_sub_u32 s{S_T0}, s{S_W}, 2")
                a(f"s_cmp_lt_u32 s{S_T0}, {nscan}")
                a(f"s_cbranch_scc0 {L}_nopoll")
                poll_issue()
                a(f"{L}_nopoll:")
                vm_after_poll = 0
                cens = low[7]
            tiles = [(P.tile[("G", f, 0, jj)], P.tile[("G", f, 1, jj)]) for f in (2*i, 2*i+1)]
            gp = []; up = []
            for n_, (g_, u_) in enumerate(tiles):
                for w_, (t_, lst) in enumerate(((g_, gp), (u_, up))):
                    if t_[0] == "a":
                        d = freed.pop()
                        for r in range(4): a(f"v_accvgpr_read_b32 v{d+r}, a{t_[1]+r}")
                        lst += [d, d+2]
                    else:
                        lst += [t_[1], t_[1]+2]
            if mimic:
                for lst in (gp, up):
                    for k in range(4): a(f"v_cvt_pk_bf16_f32 v{TT+k}, v{lst[k]}, v{lst[k]+1}")
                    for k in range(4):
                        a(f"v_lshlrev_b32 v{lst[k]}, 16, v{TT+k}")
                        a(f"v_and_b32 v{lst[k]+1}, 0xffff0000, v{TT+k}")
            pr = lambda x: f"v[{x}:{x+1}]"
            for k in range(4): a(f"v_pk_mul_f32 {pr(TT+2*k)}, {pr(gp[k])}, {pr(gp[k])}")
            for k in range(4): a(f"v_pk_fma_f32 {pr(TT+2*k)}, {pr(TT+2*k)}, s[{S_K0}:{S_K0+1}], {pr(V_EPO)}")
            for k in range(4): a(f"v_pk_mul_f32 {pr(TT+2*k)}, {pr(TT+2*k)}, {pr(gp[k])}")
            for k in range(8): a(f"v_exp_f32 v{TT+k}, v{TT+k}")
            ne = (len(early) + (ng - gi) - 1)//(ng - gi) if gi >= 1 else 0
            ne = min(len(early), max(ne, 0), 24//(ng//2) + 1)
            for _ in range(ne):
                for t in early.pop(0): a(t)
                if vm_after_poll is not None: vm_after_poll += 1
            if not mimic:
                for k in range(4): a(f"v_pk_mul_f32 {pr(gp[k])}, {pr(gp[k])}, {pr(up[k])}")
            else:
                a("s_nop 0")
            for k in range(4): a(f"v_pk_add_f32 {pr(TT+2*k)}, {pr(TT+2*k)}, s[{S_K1}:{S_K1+1}]")
            for k in range(8): a(f"v_rcp_f32 v{TT+k}, v{TT+k}")
            a(f"s_add_u32 s{S_T0}, s{S_T2 if jj < 4 else S_T3}, {((jj & 3)*NKB + i)*1024}")
            for k in range(4): a(f"v_pk_mul_f32 {pr(gp[k])}, {pr(gp[k])}, {pr(TT+2*k)}")
            if mimic:
                for k in range(4): a(f"v_cvt_pk_bf16_f32 v{TT+k}, v{gp[k]}, v{gp[k]+1}")
                for k in range(4):
                    a(f"v_lshlrev_b32 v{gp[k]}, 16, v{TT+k}")
                    a(f"v_and_b32 v{gp[k]+1}, 0xffff0000, v{TT+k}")
                for k in range(4): a(f"v_pk_mul_f32 {pr(gp[k])}, {pr(gp[k])}, {pr(up[k])}")
            O = up[0]
            for k in range(4): a(f"v_cvt_pk_bf16_f32 v{O+k}, v{gp[k]}, v{gp[k]+1}")
            a(f"buffer_store_dwordx4 v[{O}:{O+3}], v{V_LANE16}, s[{SRD_HH}:{SRD_HH+3}], s{S_T0} offen {stflag}")
            if vm_after_poll is not None: vm_after_poll += 1
            freed += [O, up[2], gp[2], gp[0]]
            gi += 1
    assert not early
    freed = [r for r in freed if r < 240]
    p2_addr(a, TT, TT+4, SP, None)
    stamp(a, opt, 7)
    a(f"s_sub_u32 s{S_T0}, s{S_W}, 2")
    a(f"s_cmp_lt_u32 s{S_T0}, {nscan}")
    a(f"s_cbranch_scc0 {L}_e4d")
    a(f"s_mov_b32 s{S_CNT}, 0x40000")
    a(f"s_waitcnt vmcnt({vm_after_poll})")
    a(f"s_branch {L}_chk")
    a(f"{L}_poll:")
    poll_issue()
    a("s_waitcnt vmcnt(0)")
    a(f"{L}_chk:")
    a(f"s_mov_b64 s[{S_K0}:{S_K0+1}], -1")
    for j in range(7):
        d = pollregs[j]
        a(f"s_cmp_ge_u32 s{S_M}, {7-j}")
        a(f"s_cselect_b32 s{S_T0}, s{S_NONCE}, 0")
        a(f"v_cmp_eq_u32 vcc, s{S_T0}, v{d+1}")
        a(f"s_and_b64 s[{S_K0}:{S_K0+1}], s[{S_K0}:{S_K0+1}], vcc")
        a(f"v_cmp_eq_u32 vcc, s{S_T0}, v{d+3}")
        a(f"s_and_b64 s[{S_K0}:{S_K0+1}], s[{S_K0}:{S_K0+1}], vcc")
    a(f"s_sub_u32 s{S_CNT}, s{S_CNT}, 1")
    a(f"s_cbranch_scc1 {L}_polld")
    a(f"s_cmp_eq_u64 s[{S_K0}:{S_K0+1}], -1")
    a(f"s_cbranch_scc0 {L}_poll")
    a(f"{L}_polld:")
    for j in range(7): a(f"v_mov_b32 v{pollregs[j]+1}, v{pollregs[j]+2}")
    a(f"v_lshrrev_b32 v{VS+6}, 4, v{V_LANE16}")
    if A: a(f"v_and_b32 v{VS+6}, 15, v{VS+6}")
    else:
        a(f"s_lshl_b32 s{S_T0}, s{S_CC}, 6")
        a(f"v_add_u32 v{VS+6}, s{S_T0}, v{VS+6}")
        a(f"v_min_u32 v{VS+6}, 79, v{VS+6}")
    a(f"v_lshlrev_b32 v{VS+6}, 3, v{VS+6}")
    a(f"v_add_u32 v{VS+6}, {LDS_C0}, v{VS+6}")
    for j in range(1, 7):
        h = pollregs[0] if j == 1 else VS+4
        a(cstep1(VS+8, h, pollregs[j], VS+2)); a(cstep2(VS+4, h, VS+8, VS+2))
    a(f"ds_write_b64 v{VS+6}, v[{VS+4}:{VS+5}]")
    a(f"{L}_e4d:")
    pool = sorted(set(freed + pollregs))
    W_, R_, PWA, PWB, C0A = TT, TT+1, TT+6, TT+7, TT+5
    R2_ = pool.pop(0)
    a(f"""
    v_lshrrev_b32 v{TT+2}, 4, v{V_LANE16}
    v_and_b32 v{TT+3}, 15, v{TT+2}
    v_lshrrev_b32 v{TT+4}, 4, v{TT+2}
    v_and_b32 v{W_}, 3, v{TT+3}
    v_lshl_add_u32 v{W_}, v{TT+4}, 2, v{W_}
    v_and_b32 v{R_}, 4, v{TT+3}
    v_xor_b32 v{W_}, v{W_}, v{R_}
    v_lshrrev_b32 v{R_}, 2, v{TT+3}
    v_lshl_add_u32 v{W_}, v{R_}, 4, v{W_}
    v_lshlrev_b32 v{W_}, 4, v{W_}
    s_lshl_b32 s{S_T0}, s{S_W}, 13
    s_add_u32 s{S_T0}, s{S_T0}, {LDS_TR}
    v_add_u32 v{W_}, s{S_T0}, v{W_}
    ; read (h=0): (q>>1)*512 + (4c + r)*16 + (q&1)*8 ; h=1: +256, ^64
    v_and_b32 v{R2_}, 3, v{TT+2}
    v_lshl_add_u32 v{R_}, v{R2_}, 2, v{R_}
    v_lshlrev_b32 v{R_}, 4, v{R_}
    v_lshrrev_b32 v{R2_}, 5, v{TT+2}
    v_lshl_add_u32 v{R_}, v{R2_}, 9, v{R_}
    v_and_b32 v{R2_}, 1, v{TT+4}
    v_lshl_add_u32 v{R_}, v{R2_}, 3, v{R_}
    v_add_u32 v{R_}, s{S_T0}, v{R_}
    v_xor_b32 v{R2_}, 64, v{R_}
    v_lshlrev_b32 v{C0A}, 3, v{TT+3}
    v_mul_u32_u24 v{TT+4}, 640, v{TT+4}
    v_add_u32 v{TT+4}, v{TT+4}, v{C0A}
    s_mul_i32 s{S_T0}, s{S_RH}, {8*640}
    s_add_u32 s{S_T0}, s{S_T0}, {LDS_PW}
    s_mul_i32 s{S_T1}, s{S_CC}, {4*640}
    s_add_u32 s{S_T2}, s{S_T0}, s{S_T1}
    s_sub_u32 s{S_T1}, {4*640}, s{S_T1}
    s_add_u32 s{S_T3}, s{S_T0}, s{S_T1}
    v_add_u32 v{PWA}, s{S_T2}, v{TT+4}
    v_add_u32 v{PWB}, s{S_T3}, v{TT+4}
    v_add_u32 v{C0A}, {LDS_C0}, v{C0A}
    s_lshl_b32 s{S_T0}, s{S_GRP}, 3
    s_add_u32 s{S_T0}, s{S_T0}, s{S_C}
    s_add_u32 s{S_T0}, s{S_T0}, 112
    s_lshl_b32 s{S_T0}, s{S_T0}, 10
    s_add_u32 s{S_T2}, s{S_HLO}, s{S_T0}
    s_lshl_b32 s{S_T1}, s{S_CC}, 11
    s_add_u32 s{S_T0}, s{S_T0}, s{S_T1}
    s_add_u32 s{S_HLO}, s{S_HLO}, s{S_T0}
    s_add_u32 s{S_HHI}, s{S_HHI}, s{S_T0}
    s_lshl_b32 s{S_T1}, s{S_CC}, 8
    """)
    if not A:
        a(f"v_add_u32 v{TT+2}, s{S_T1}, v{PWA}")
        a(f"v_add_u32 v{TT+3}, s{S_T1}, v{PWB}")
        a(f"v_add_u32 v{TT+4}, s{S_T1}, v{C0A}")
    a(f"""
    s_andn2_b32 s{S_T0}, s{S2_RB}, 1
    s_add_u32 s{S_T0}, s{S_T0}, s{S_KI}
    s_lshl_b32 s{S_FLG}, s{S_T0}, 7
    s_lshl_b32 s{S_T1}, s{S_M}, 5
    s_add_u32 s{S_T1}, s{S_T1}, s{S_N}
    s_lshl_b32 s{S_PUB}, s{S_T1}, 3
    s_lshr_b32 s{S_T1}, s{S_T1}, 4
    s_cmp_eq_u32 s{S_T0}, s{S_T1}
    s_cselect_b32 s{S_OWN}, 0x10001, 0
    s_and_b32 s{S_T0}, s{S_N}, 15
    s_lshl_b32 s{S_OWN}, s{S_OWN}, s{S_T0}
    s_mov_b32 s{S_OWN+1}, s{S_OWN}
    s_add_u32 s{S_FLG}, s{S_FLG}, {WS_HFLG - WS_GATE}
    s_add_u32 s{S_PUB}, s{S_PUB}, {WS_HFLG - WS_GATE}
    """)
    a(f"v_bfe_u32 v{V2_FA}, v{V_LANE16}, 4, 4"); a(f"v_lshlrev_b32 v{V2_FA}, 3, v{V2_FA}")
    mrg = opt.get("merge_b3_" + typ, 1)
    add64(a, SRD_T, ptr(P_WS), WS_GATE)
    a(f"s_mov_b32 s{SRD_T+2}, {WS_XFLG - WS_GATE}")
    a("s_waitcnt vmcnt(0) lgkmcnt(0)" if mrg else "s_waitcnt lgkmcnt(0)")
    a("s_barrier")
    if mrg: a(publish(f"{L}_pg", cens + 2)); stamp(a, opt, 11)
    gpoll = f"buffer_load_dwordx2 v[{cens}:{cens+1}], v{V2_FA}, s[{SRD_T}:{SRD_T+3}], s{S_FLG} offen sc0 sc1"
    stamp(a, opt, 8)
    PWr = [pool[0], pool[0]+2, pool[1], pool[1]+2, pool[2]]
    C0r = [pool[2]+2, pool[3], pool[3], pool[3]+2, pool[3]+2]
    pool = pool[4:]
    for ui in range(nu):
        kind, idx, jj0 = units[ui]
        va, off = faddr(ui)
        a(f"ds_read_b64 v[{VH+2*ui}:{VH+2*ui+1}], v{va} offset:{off}")
        if kind == "H":
            a(f"ds_read_b64 v[{PWr[ui]}:{PWr[ui]+1}], v{PWA} offset:{idx*128}")
            a(f"ds_read_b64 v[{C0r[ui]}:{C0r[ui]+1}], v{C0A} offset:{idx*128}")
        else:
            a(f"ds_read_b64 v[{PWr[ui]}:{PWr[ui]+1}], v{TT+2 if jj0 == 0 else TT+3} offset:{idx*128}")
            if jj0 == 0: a(f"ds_read_b64 v[{C0r[ui]}:{C0r[ui]+1}], v{TT+4} offset:{idx*128}")
    a(f"""
    s_lshl_b32 s{S_T0}, s{S2_RB}, 2
    s_add_u32 s{S_T0}, s{S_T0}, s{S_W}
    s_mul_i32 s{S_T0}, s{S_T0}, {2*NKB*1024}
    s_add_u32 s{SRD_H}, s{ptr(P_WS)}, s{S_T0}
    s_addc_u32 s{SRD_H+1}, s{ptr(P_WS)+1}, 0
    s_mov_b32 s{SRD_H+2}, {2*NKB*1024}
    s_mul_i32 s{S2_H0}, s{S_KI}, {56*1024}
    s_add_u32 s{S2_H1}, s{S2_H0}, {NKB*1024}
    s_xor_b32 s{S2_MW}, s{S2_MW}, 65536
    s_waitcnt lgkmcnt(0)
    """)
    for ui in range(nu): a(cstep1(tmps[ui], C0r[ui], VH+2*ui, PWr[ui]))
    for ui in range(nu): a(cstep2(VH+2*ui, C0r[ui], tmps[ui], PWr[ui]))
    S = Stream(a)
    nst = [0]
    P2 = gm.P2S(128, opt)
    def st_item(p):
        O, base, off, id = p
        def f():
            a(f"s_add_u32 s{S_T0}, s{base}, {off}")
            S.need([id])
            a(f"buffer_store_dwordx4 v[{O}:{O+3}], v{V_LANE16}, s[{SRD_HH}:{SRD_HH+3}], s{S_T0} offen {opt.get('sstore', 'sc0 sc1')}")
            nst[0] += 1
        return f
    pend = []
    pblk_ = opt.get("pblk_" + typ, 3)
    hold = A
    held = []
    b3 = -1 if mrg else opt.get("b3_" + typ, 4 if A else 1)
    def bar3():
        a(f"s_waitcnt vmcnt({nst[0]})")
        a("s_barrier")
        a(publish(f"{L}_pg", cens + 2))
        stamp(a, opt, 11)
    for b in range(4):
        if b == b3: bar3()
        if b == pblk_: a(gpoll); nst[0] = 0
        valu = []
        for r in range(4):
            s_ = 4*b + r
            hs = [VH + 2*ui if s_ == 0 else ureg(ui, s_-1) for ui in range(nu)]
            valu += [cstep1(tmps[ui], hs[ui], ureg(ui, s_), pblk[ui]) for ui in range(nu)]
            valu += [cstep2(ureg(ui, s_), hs[ui], tmps[ui], pblk[ui]) for ui in range(nu)]
        for ui in range(nu):
            U = ublk[(ui, b)]; O = U
            valu += [f"v_cvt_pk_bf16_f32 v{O}, v{U}, v{U+2}", f"v_cvt_pk_bf16_f32 v{O+2}, -v{U+1}, -v{U+3}",
                     f"v_cvt_pk_bf16_f32 v{O+1}, v{U+4}, v{U+6}", f"v_cvt_pk_bf16_f32 v{O+3}, -v{U+5}, -v{U+7}",
                     (lambda O=O, ui=ui, b=b: S.ds(f"ds_write_b128 v{W_}, v[{O}:{O+3}] offset:{ui*1024}", ("w", b, ui)))]
        merged = [st_item(p) for p in pend]
        if hold: held += merged; merged = []
        step = max(1, (len(valu) - 4)//(len(merged) + 1))
        for i_, v_ in enumerate(valu):
            if callable(v_): v_()
            else: a(v_)
            if merged and i_ >= 3 and (i_ - 3) % step == 0: merged.pop(0)()
        for m_ in merged: m_()
        pend = []
        for ui in range(nu):
            O = ublk[(ui, b)]
            kind, idx, jj0 = units[ui]
            S.ds(f"ds_read_b64_tr_b16 v[{O}:{O+1}], v{R_} offset:{ui*1024}", None)
            S.ds(f"ds_read_b64_tr_b16 v[{O+2}:{O+3}], v{R2_} offset:{ui*1024+256}", ("r", b, ui))
            base = S_T2 if kind == "H" else (S_HLO if jj0 == 0 else S_HHI)
            pend.append((O, base, (b*NKB + idx)*1024, ("r", b, ui)))
    held += [st_item(p) for p in pend]
    if b3 >= 4: bar3()
    if pblk_ >= 4: a(gpoll); nst[0] = 0
    stamp(a, opt, 9)
    a(f"s_mov_b32 s{S_CNT}, 0x40000")
    a(f"s_waitcnt vmcnt({nst[0]})")
    a(flagcheck(f"{L}_gc", cens, gpoll))
    for kb in range(4):
        for tf in range(2): a(P2.hload(0, kb, tf))
    a(f"s_add_u32 s{S2_H0}, s{S2_H0}, 4096"); a(f"s_add_u32 s{S2_H1}, s{S2_H1}, 4096")
    for f_ in held: f_()
    stamp(a, opt, 10)
    a("s_branch L2_start")

def publish(lab, tmp, off=0):
    return f"""
    s_cmp_eq_u32 s{S_W}, 0
    s_cbranch_scc0 {lab}_d
    s_add_u32 s{S_T0}, s{S_PUB}, {off}
    v_mov_b32 v{tmp}, s{S_NONCE}
    v_mov_b32 v{tmp+1}, s{S_NONCE}
    s_mov_b64 exec, 1
    buffer_store_dwordx2 v[{tmp}:{tmp+1}], v{V2_FA}, s[{SRD_T}:{SRD_T+3}], s{S_T0} offen sc0 sc1
    s_mov_b64 exec, -1
    s_nop 1
{lab}_d:
"""

def flagcheck(lab, r, reload):
    return f"""
{lab}_c:
    v_cmp_eq_u32 vcc, s{S_NONCE}, v{r}
    s_mov_b64 s[{S_K0}:{S_K0+1}], vcc
    v_cmp_eq_u32 vcc, s{S_NONCE}, v{r+1}
    s_and_b64 s[{S_K0}:{S_K0+1}], s[{S_K0}:{S_K0+1}], vcc
    s_or_b64 s[{S_K0}:{S_K0+1}], s[{S_K0}:{S_K0+1}], s[{S_OWN}:{S_OWN+1}]
    s_cmp_eq_u64 s[{S_K0}:{S_K0+1}], -1
    s_cbranch_scc1 {lab}_ok
    {reload}
    s_waitcnt vmcnt(0)
    s_sub_u32 s{S_CNT}, s{S_CNT}, 1
    s_cbranch_scc0 {lab}_c
{lab}_ok:
"""

def p2_addr(a, t0, t1, t2, t3):
    ln, u, l7, q = t0, t0+1, t0+2, t0+3
    x0, x1, x2, r = t1, t1+1, t1+2, t1+3
    y0, qo, rho = t2, t2+1, t2+2
    a(f"""
    v_lshrrev_b32 v{ln}, 4, v{V_LANE16}
    v_lshrrev_b32 v{u}, 3, v{ln}
    v_and_b32 v{l7}, 7, v{ln}
    v_lshrrev_b32 v{q}, 4, v{ln}
    v_mov_b32 v{V2_DA}, v0
    v_mov_b32 v{V2_DB}, v0
    v_xor_b32 v{x0}, v{l7}, v{q}
    v_lshlrev_b32 v{x0}, 4, v{x0}
    v_lshl_add_u32 v{V2_DC}, v{u}, 11, v{x0}
    v_bfe_u32 v{r}, v{ln}, 2, 2
    v_lshrrev_b32 v{x1}, 5, v{ln}
    v_lshlrev_b32 v{y0}, 3, v{x1}
    v_lshl_add_u32 v{y0}, v{r}, 1, v{y0}
    v_and_b32 v{qo}, 1, v{q}
    v_add_u32 v{y0}, v{y0}, v{qo}
    v_lshlrev_b32 v{y0}, 7, v{y0}
    v_and_b32 v{x2}, 3, v{ln}
    v_lshl_add_u32 v{y0}, v{x2}, 3, v{y0}
    """)
    for f in range(4):
        a(f"v_xor_b32 v{x2}, {f}, v{r}")
        a(f"v_lshl_add_u32 v{V2_AW+f}, v{x2}, 5, v{y0}")
    a(f"""
    v_and_b32 v{rho}, 15, v{ln}
    v_lshrrev_b32 v{x2}, 1, v{rho}
    v_xor_b32 v{x2}, v{x1}, v{x2}
    v_lshlrev_b32 v{x2}, 4, v{x2}
    v_lshl_add_u32 v{x2}, v{rho}, 7, v{x2}
    v_lshl_add_u32 v{V2_AC}, v{qo}, 14, v{x2}
    v_xor_b32 v{V2_AC+1}, 32, v{V2_AC}
    v_xor_b32 v{V2_AC+2}, 64, v{V2_AC}
    v_xor_b32 v{V2_AC+3}, 96, v{V2_AC}
    """)

for k in ("SRD_WT SRD_H SRD_O S2_OW S2_MW S2_ADV S2_H0 S2_H1 S2_IT").split():
    assert getattr(g2, k) == globals()[k], k

LDS2_X = 131072

def phase2(a, opt):
    P = gm.P2S(128, opt); P.setup()
    P.S = Stream(a); P.vm = VM(); P.hdone = set(); P.dskip = 0
    vm = P.vm
    for st in range(3):
        for i in range(8): vm.issue(("d", st & 1, i))
    for kb in range(4):
        for tf in range(2): vm.issue(("h", 0, kb, tf))
    a("L2_start:")
    for _ in range(opt.get("diag_sleep2", 0)): a("s_sleep 100")
    for n in range(P.LA):
        for t in P.wloads("G", 0, n): P.S.ds(t, ("w", 0, n))
    a(f"""
    s_lshl_b32 s{S_T0}, s{S2_RB}, 7
    s_lshl_b32 s{S_T1}, s{S_RH}, 6
    s_add_u32 s{S_T0}, s{S_T0}, s{S_T1}
    s_lshl_b32 s{S_T1}, s{S_CC}, 3
    s_add_u32 s{S_HLO}, s{S_T0}, s{S_T1}        ; t base
    s_lshl_b32 s{S_HHI}, s{S2_DB}, 1
    s_add_u32 s{S_HHI}, s{S_HHI}, s{S_KI}
    s_lshl_b32 s{S_HHI}, s{S_HHI}, 6
    s_mul_i32 s{S_K1}, s{S_KI}, {(20 if opt.get("shift", 1) else 24)*1024}
    s_sub_u32 s{S_K1}, {56*1024}, s{S_K1}
    s_andn2_b32 s{S_K1+1}, s{S_FLG}, 128
    s_add_u32 s{S_K1+1}, s{S_K1+1}, {WS_SFLG - WS_HFLG}
    v_bfe_u32 v15, v{V_LANE16}, 4, 5
    v_lshlrev_b32 v15, 3, v15
    s_mov_b64 s[{S_OWN}:{S_OWN+1}], 0
    """)
    P.pf2 = None
    if opt.get("p2pf", 0):
        dh = opt.get("p2pf_h", 2); dw = opt.get("p2pf_w", 2)
        VH_, VW_, VC_, VD_ = 14, 15, 12, 13
        a(f"""
    v_lshrrev_b32 v2, 4, v{V_LANE16}
    v_bfe_u32 v3, v2, 3, 1
    v_mul_u32_u24 v3, {NKB*1024}, v3
    v_and_b32 v4, 7, v2
    v_lshl_add_u32 v3, v4, 7, v3
    v_lshrrev_b32 v5, 4, v2
    v_lshl_add_u32 v3, v5, 12, v3
    s_and_b32 s{S_T0}, s{S2_DB}, 3
    s_lshl_b32 s{S_T0}, s{S_T0}, 10
    s_add_u32 s{S_T0}, s{S_T0}, {dh*4096}
    v_add_u32 v3, s{S_T0}, v3
    v_mov_b32 v6, 0x80000000
    v_cmp_gt_u32 vcc, 32, v2
    s_and_b32 s{S_T0}, s{S2_RB}, 7
    s_lshl_b32 s{S_T0}, s{S_T0}, 3
    v_cndmask_b32 v{VH_}, v6, v3, vcc
    v_add_u32 v4, s{S_T0}, v4
    v_lshlrev_b32 v4, 11, v4
    v_cmp_gt_u32 vcc, 16, v2
    v_bfe_u32 v5, v2, 3, 1
    s_mul_i32 s{S_T0}, s{S_KI}, 28
    s_add_u32 s{S_T0}, s{S_T0}, s{S_CC}
    s_add_u32 s{S_T0}, s{S_T0}, {2*(3 + dw)}
    s_lshl_b32 s{S_T0}, s{S_T0}, 17
    s_xor_b32 s{S_T1}, s{S_RH}, s{S_KI}
    s_lshl_b32 s{S_T2}, s{S2_DB}, 1
    s_add_u32 s{S_T1}, s{S_T1}, s{S_T2}
    s_lshl_b32 s{S_T1}, s{S_T1}, 7
    s_add_u32 s{S_T0}, s{S_T0}, s{S_T1}
    v_lshl_add_u32 v3, v5, 18, v4
    v_add_u32 v3, s{S_T0}, v3
    v_cndmask_b32 v{VW_}, v6, v3, vcc
    s_xor_b32 s{S_T1}, s{S_CC}, s{S_KI}
    s_add_u32 s{S_T1}, s{S_T1}, s{S_T2}
    s_lshl_b32 s{S_T1}, s{S_T1}, 17
    s_lshl_b32 s{S_T0}, s{S_KI}, 10
    s_add_u32 s{S_T0}, s{S_T0}, s{S_T1}
    v_lshl_add_u32 v3, v5, 7, v4
    v_add_u32 v3, s{S_T0}, v3
    v_cndmask_b32 v{VC_}, v6, v3, vcc
    s_mov_b32 s20, s{ptr(P_WD)}
    s_mov_b32 s21, s{ptr(P_WD)+1}
    s_mov_b32 s22, {3584*2048}
    s_mov_b32 s23, 0x20000
    s_mov_b32 s24, {2*128*2048}
    """)
        P.pf2 = [f"buffer_load_dword v{VD_}, v{VH_}, s[{SRD_H}:{SRD_H+3}], s{S2_H0} offen",
                 f"buffer_load_dword v{VD_}, v{VW_}, s[20:23], 0 offen", f"v_add_u32 v{VW_}, s24, v{VW_}"]
        P.pf2sw_it = opt.get("p2pf_swit", 1)
        P.pf2sw = [f"s_cmp_lt_u32 s{S_W}, 2", f"s_cselect_b32 s20, s{ptr(P_CRE)}, s{ptr(P_CIM)}", f"s_cselect_b32 s21, s{ptr(P_CRE)+1}, s{ptr(P_CIM)+1}",
                   f"s_mov_b32 s22, {1024*2048}", "s_mov_b32 s24, 256", f"v_mov_b32 v{VW_}, v{VC_}"]
    if opt.get("p2_nodma"): a(f"s_mov_b32 s{SRD_WT+2}, 0")
    if opt.get("p2_noh"): a(f"s_mov_b32 s{SRD_H+2}, 0")
    P.after_first_bar = publish("L2_ps", 16, WS_SFLG - WS_HFLG)
    P.S_KI = S_KI
    P.spoll = f"buffer_load_dwordx2 v[16:17], v15, s[{SRD_T}:{SRD_T+3}], s{S_K1+1} offen sc0 sc1"
    def scheck(n):
        a(f"s_mov_b32 s{S_T3}, s{S_CNT}")
        a(f"s_mov_b32 s{S_CNT}, 0x40000")
        a(f"s_waitcnt vmcnt({n})")
        a(flagcheck("L2_sc", 16, P.spoll))
    P.scheck = scheck
    XA, XB, DA_ = 18, 19, 20
    gl = lambda tf: f"buffer_load_dwordx2 v[{48+2*tf}:{49+2*tf}], v{V2_GA}, s[{SRD_T}:{SRD_T+3}], s{S_GOFF} offen offset:{32*tf} sc0 sc1"
    rdy = f"buffer_load_dwordx2 v[46:47], v21, s[{SRD_O}:{SRD_O+3}], s{S_RDY} offen sc0 sc1"
    P.gl = gl; P.rdy = rdy
    SX = SRD_O
    XR = 200
    for _ in range(4): vm.issue("held")
    a(f"""
    v_bfe_u32 v24, v{V_LANE16}, 4, 4
    v_lshrrev_b32 v23, 2, v24
    v_lshlrev_b32 v23, 4, v23
    v_and_b32 v22, 3, v24
    v_add_u32 v22, v22, v23
    v_lshlrev_b32 v{V2_GA}, 3, v22
    s_lshl_b32 s{S_GOFF}, s{S_HLO}, 3
    v_lshrrev_b32 v22, 7, v{V_LANE16}
    v_lshrrev_b32 v23, 2, v22
    v_lshlrev_b32 v23, 4, v23
    v_and_b32 v22, 3, v22
    v_add_u32 v22, v22, v23
    v_and_b32 v23, 0x7ff, v{V2_DC}
    v_lshl_add_u32 v{XA}, v22, 11, v23
    v_xor_b32 v{XB}, 64, v{XA}
    v_lshlrev_b32 v{DA_}, 1, v24
    v_mov_b32 v21, 0
    s_lshl_b32 s{S_T1}, s{S_HHI}, 1
    s_lshl_b32 s{S_T0}, s{S_HLO}, 11
    s_add_u32 s{S_T0}, s{S_T0}, s{S_T1}
    s_add_u32 s{SX}, s{ptr(P_X)}, s{S_T0}
    s_addc_u32 s{SX+1}, s{ptr(P_X)+1}, 0
    s_mov_b32 s{SX+2}, {64*2048}
    s_lshl_b32 s{S_T2}, s{S_W}, 13
    s_add_u32 s{S_T2}, s{S_T2}, {LDS_TR}
    """)
    for k_, (tf, hf) in enumerate(((0, 0), (0, 1), (1, 0), (1, 1))):
        a(f"s_add_u32 m0, s{S_T2}, {(tf*2+hf)*1024}\ns_mov_b32 s{S_T0}, {(4*tf + 32*hf)*2048}\nbuffer_load_dwordx4 v{XA+hf}, s[{SX}:{SX+3}], s{S_T0} offen lds"); vm.issue(("x", k_))
    a(f"s_add_u32 s{SX}, s{ptr(P_DSK)}, s{S_T1}\ns_addc_u32 s{SX+1}, s{ptr(P_DSK)+1}, 0\ns_mov_b32 s{SX+2}, 128")
    for f in range(4):
        a(f"buffer_load_ushort v{36+f}, v{DA_}, s[{SX}:{SX+3}], 0 offen offset:{32*f}"); vm.issue(("D", f))
    a(gl(0)); vm.issue("g0"); a(gl(1)); vm.issue("g1")
    a(f"""
    s_add_u32 s{SRD_O}, s{ptr(P_WS)}, {WS_XFLG}
    s_addc_u32 s{SRD_O+1}, s{ptr(P_WS)+1}, 0
    s_mov_b32 s{SRD_O+2}, {1024*64}
    s_xor_b32 s{S_RDY}, s{S_SLOT}, 4
    s_lshl_b32 s{S_RDY}, s{S_RDY}, 6
    v_lshrrev_b32 v23, 8, v{V_LANE16}
    v_lshrrev_b32 v28, 1, v24
    v_xor_b32 v28, v28, v23
    v_lshlrev_b32 v28, 4, v28
    v_lshl_add_u32 v28, v24, 7, v28
    v_add_u32 v28, s{S_T2}, v28
    v_xor_b32 v29, 64, v28
    """)
    stamp(a, opt, 12)
    def first_extra(par):
        if par == 1: return []
        L_ = [Item("blk", lambda: a(f"s_waitcnt vmcnt({P.vmN(('x', 3))})"), 34, 34, cost=4)]
        for kb in range(2):
            for tf in range(2):
                t = XR + 4*(2*kb + tf)
                L_.append(Item("ds", f"ds_read_b128 v[{t}:{t+3}], v{28+kb} offset:{tf*2048}", 35, 40, ("xr", kb, tf), chain="xr"))
        L_.append(Item("blk", lambda: P.S.need([("xr", 1, 1)]), P.BAR - 1, P.BAR - 1, cost=4))
        return L_
    P.first_extra = first_extra
    def sfirst_extra(par):
        L_ = []
        if par == 0:
            L_.append(Item("vm", rdy, 59, 59, "rdy"))
            oa = f"""v_lshrrev_b32 v236, 4, v{V_LANE16}
v_and_b32 v237, 15, v236
v_lshrrev_b32 v238, 4, v236
v_and_b32 v232, 7, v237
v_xor_b32 v232, v232, v238
v_lshlrev_b32 v232, 4, v232
v_lshl_add_u32 v232, v237, 8, v232
s_lshl_b32 s{S_K0}, s{S_W}, 13
s_add_u32 s{S_K0}, s{S_K0}, 131072
v_add_u32 v232, s{S_K0}, v232
v_xor_b32 v234, v237, v238
v_lshlrev_b32 v234, 4, v234
v_lshl_add_u32 v234, v238, 8, v234
v_add_u32 v234, s{S_K0}, v234
v_xor_b32 v235, 64, v234
v_lshlrev_b32 v233, 12, v238
v_lshl_add_u32 v233, v237, 4, v233""".split("\n")
            for t in oa: L_.append(Item("v", t, 2, 64, chain="oa"))
        if opt.get("last2", 1):
            dg = seq[8:-5]
            L_ += mk(dg[:20] if par == 0 else dg[20:], 2, 64)
        return L_
    P.sfirst_extra = sfirst_extra
    def gchk():
        a(f"""
    s_mov_b32 s{S_CNT}, 0x40000
    s_waitcnt vmcnt(24)
L2_gchk:
    v_cmp_eq_u32 vcc, s{S_NONCE}, v49
    s_mov_b64 s[{S_K0}:{S_K0+1}], vcc
    v_cmp_eq_u32 vcc, s{S_NONCE}, v51
    s_and_b64 s[{S_K0}:{S_K0+1}], s[{S_K0}:{S_K0+1}], vcc
    v_cmp_eq_u32 vcc, s{S_NONCE}, v46
    s_and_b64 s[{S_K0}:{S_K0+1}], s[{S_K0}:{S_K0+1}], vcc
    v_cmp_eq_u32 vcc, s{S_NONCE}, v47
    s_and_b64 s[{S_K0}:{S_K0+1}], s[{S_K0}:{S_K0+1}], vcc
    s_cmp_eq_u64 s[{S_K0}:{S_K0+1}], -1
    s_cbranch_scc1 L2_gok
    {gl(0)}
    {gl(1)}
    {rdy}
    s_waitcnt vmcnt(0)
    s_sub_u32 s{S_CNT}, s{S_CNT}, 1
    s_cbranch_scc0 L2_gchk
L2_gok:
    """)
    seq = []
    for tf in range(2):
        g = 48 + 2*tf
        seq += [f"v_sub_f32 v{24+2*tf}, 1.0, v{g}", f"v_cvt_pk_bf16_f32 v{24+2*tf}, v{24+2*tf}, v{24+2*tf}",
                f"v_and_b32 v{24+2*tf}, 0xffff0000, v{24+2*tf}", f"v_add_f32 v{25+2*tf}, v{g}, v{g}"]
    seq += [f"v_bfe_u32 v22, v{V_LANE16}, 4, 4", f"v_lshrrev_b32 v23, 8, v{V_LANE16}"]
    DG = XR + 16
    seq += ["v_and_b32 v30, 1, v22", "v_lshlrev_b32 v30, 4, v30", "v_lshrrev_b32 v31, 3, v22", "v_sub_u32 v31, v23, v31",
            "v_bfe_u32 v32, v22, 1, 2", "v_lshl_add_u32 v31, v31, 2, v32"]
    for f in range(4):
        seq += [f"v_lshlrev_b32 v{36+f}, 16, v{36+f}", f"v_mul_f32 v{36+f}, 0.5, v{36+f}", f"v_lshrrev_b32 v{36+f}, 16, v{36+f}", f"v_lshlrev_b32 v{36+f}, v30, v{36+f}"]
    for par_ in range(2):
        for dw in range(4):
            seq += [f"v_cmp_eq_u32 vcc, {8*par_ + dw}, v31", "s_nop 1",
                    f"v_cndmask_b32 v{DG + 4*par_ + dw}, 0, v{36+par_}, vcc", f"v_cndmask_b32 v{DG + 8 + 4*par_ + dw}, 0, v{38+par_}, vcc"]
    P.xd_mfma = [f"v_mfma_f32_16x16x32_bf16 v[{P.acc('S', f, tf)}:{P.acc('S', f, tf)+3}], v[{DG+4*f}:{DG+4*f+3}], v[{XR+4*(2*(f>>1)+tf)}:{XR+4*(2*(f>>1)+tf)+3}], v[{P.acc('S', f, tf)}:{P.acc('S', f, tf)+3}]"
                 for f in range(4) for tf in range(2)]
    seq += f"""s_lshl_b32 s{S_T0}, s{S_HLO}, 12
s_lshl_b32 s{S_T1}, s{S_HHI}, 2
s_add_u32 s{S_T0}, s{S_T0}, s{S_T1}
s_add_u32 s{SRD_O}, s{ptr(P_OUT)}, s{S_T0}|s_addc_u32 s{SRD_O+1}, s{ptr(P_OUT)+1}, 0
s_mov_b32 s{SRD_O+2}, {56*4096}""".split("\n")
    seq = [t.replace("|", "\n") if isinstance(t, str) else t for t in seq]
    half = opt.get("pre_split", 42)
    IN = 184
    P.xload = [f"buffer_load_dwordx4 v[{IN+4*f}:{IN+4*f+3}], v{V_LANE16}, s[{SRD_WT}:{SRD_WT+3}], s{S_K1+1} offen offset:{f*1024} sc0 sc1" for f in range(4)]
    def mk(seq_, lo, hi):
        out = []
        for t in seq_:
            if isinstance(t, tuple) and t[0] == "ds": out.append(Item("ds", t[1], lo, hi, t[2], chain="pre"))
            elif isinstance(t, tuple): out.append(Item("blk", (lambda id=t[1]: P.S.need([id])), lo, hi, chain="pre", cost=4))
            else: out.append(Item("v", t, lo, hi, chain="pre", cost=8 if "\n" in t else 4))
        return out
    sf = opt.get("sentfirst", 1)
    def last_extra(par):
        if par == 0:
            sc = []
            if sf:
                for f in range(4, 8):
                    for tf in range(2):
                        G = P.acc("G", f, tf)
                        sc += [f"v_mul_f32 v{G+r}, v{24+2*tf}, v{G+r}" for r in range(4)]
            pre = f"""s_lshl_b32 s{S_K1}, s{S_SLOT}, 12
s_xor_b32 s{S_K1+1}, s{S_K1}, {4 << 12}
s_add_u32 s{SRD_WT}, s{ptr(P_WS)}, {WS_XBUF}|s_addc_u32 s{SRD_WT+1}, s{ptr(P_WS)+1}, 0
s_mov_b32 s{SRD_WT+2}, {1024*4096}""".split("\n")
            return [Item("blk", gchk, 1, 1, cost=40)] + mk(seq[:8] + sc + [t.replace("|", "\n") for t in pre] + seq[8:half], 2, 64)
        L_ = mk(seq[half:], 0, 36 if sf else 62)
        xp = opt.get("xl_pos", 24 if sf else 44)
        for f in range(4): L_.append(Item("vm", P.xload[f], xp + 2*f + 1, xp + 2*f + 1, ("in", f)))
        if sf:
            for f in range(4, 8):
                lo = 24 + 2*(f - 4) + 11
                sq = []
                for tf in range(2):
                    G = P.acc("G", f, tf); Sx = P.acc("S", f, tf)
                    sq += [f"v_fmac_f32 v{G+r}, v{25+2*tf}, v{Sx+r}" for r in range(4)]
                G0 = P.acc("G", f, 0); G1 = P.acc("G", f, 1); O = P.acc("S", f, 0)
                sq += [f"v_cvt_pk_bf16_f32 v{O}, v{G0}, v{G0+1}", f"v_cvt_pk_bf16_f32 v{O+1}, v{G0+2}, v{G0+3}",
                       f"v_cvt_pk_bf16_f32 v{O+2}, v{G1}, v{G1+1}", f"v_cvt_pk_bf16_f32 v{O+3}, v{G1+2}, v{G1+3}"]
                for t in sq: L_.append(Item("v", t, lo, 72, chain="snd"))
                L_.append(Item("vm", f"buffer_store_dwordx4 v[{O}:{O+3}], v{V_LANE16}, s[{SRD_WT}:{SRD_WT+3}], s{S_K1} offen offset:{(f-4)*1024} sc0 sc1", lo, 72, ("snd", f), chain="snd"))
        return L_
    def last2_extra():
        sc = []
        for f in range(4, 8):
            for tf in range(2):
                G = P.acc("G", f, tf)
                sc += [f"v_mul_f32 v{G+r}, v{24+2*tf}, v{G+r}" for r in range(4)]
        pre = f"""s_lshl_b32 s{S_K1}, s{S_SLOT}, 12
s_xor_b32 s{S_K1+1}, s{S_K1}, {4 << 12}
s_add_u32 s{SRD_WT}, s{ptr(P_WS)}, {WS_XBUF}|s_addc_u32 s{SRD_WT+1}, s{ptr(P_WS)+1}, 0
s_mov_b32 s{SRD_WT+2}, {1024*4096}""".split("\n")
        L_ = [Item("blk", gchk, 5, 5, cost=40)] + mk(seq[:8] + sc + [t.replace("|", "\n") for t in pre], 6, 70)
        for f in range(4, 8):
            lo = 64 + 2*(f - 4) + 11
            sq = []
            for tf in range(2):
                G = P.acc("G", f, tf); Sx = P.acc("S", f, tf)
                sq += [f"v_fmac_f32 v{G+r}, v{25+2*tf}, v{Sx+r}" for r in range(4)]
            G0 = P.acc("G", f, 0); G1 = P.acc("G", f, 1); O = P.acc("S", f, 0)
            sq += [f"v_cvt_pk_bf16_f32 v{O}, v{G0}, v{G0+1}", f"v_cvt_pk_bf16_f32 v{O+1}, v{G0+2}, v{G0+3}",
                   f"v_cvt_pk_bf16_f32 v{O+2}, v{G1}, v{G1+1}", f"v_cvt_pk_bf16_f32 v{O+3}, v{G1+2}, v{G1+3}"]
            hi_ = 84 + 8*(f - 4)
            for t in sq: L_.append(Item("v", t, lo, hi_, chain="snd"))
            L_.append(Item("vm", f"buffer_store_dwordx4 v[{O}:{O+3}], v{V_LANE16}, s[{SRD_WT}:{SRD_WT+3}], s{S_K1} offen offset:{(f-4)*1024} sc0 sc1", lo, hi_ + 1, ("snd", f), chain="snd"))
        rest = mk(seq[-5:], 30, 124)
        for it in rest: it.chain = "pre2"
        L_ += rest
        own = []
        for f in range(4):
            for tf in range(2):
                G = P.acc("G", f, tf)
                own += [f"v_mul_f32 v{G+r}, v{24+2*tf}, v{G+r}" for r in range(4)]
        L_ += [Item("v", t, 40, 136, chain="own") for t in own]
        xp = opt.get("xl_pos2", 127)
        for f in range(4): L_.append(Item("vm", P.xload[f], xp + 2*f, xp + 2*f, ("in", f)))
        return L_
    P.last2_extra = last2_extra
    P.last_extra = last_extra
    sw = [f"s_cmp_lt_u32 s{S_W}, 2",
          f"s_cselect_b32 s{SRD_WT}, s{ptr(P_CRE)}, s{ptr(P_CIM)}",
          f"s_cselect_b32 s{SRD_WT+1}, s{ptr(P_CRE)+1}, s{ptr(P_CIM)+1}",
          f"s_lshl_b32 s{S_T0}, s{S2_DB}, 1", f"s_xor_b32 s{S_T1}, s{S_CC}, s{S_KI}", f"s_add_u32 s{S_T0}, s{S_T0}, s{S_T1}",
          f"s_lshl_b32 s{S_T0}, s{S_T0}, 17", f"s_mul_i32 s{S_T1}, s{S_KI}, {1152 if opt.get('shift', 1) else 1024}", f"s_add_u32 s{S_T0}, s{S_T0}, s{S_T1}",
          f"s_add_u32 s{SRD_WT}, s{SRD_WT}, s{S_T0}", f"s_addc_u32 s{SRD_WT+1}, s{SRD_WT+1}, 0",
          f"s_sub_u32 s{SRD_WT}, s{SRD_WT}, {3072 + 128}", f"s_subb_u32 s{SRD_WT+1}, s{SRD_WT+1}, 0",
          f"s_mov_b32 s{S2_ADV}, 128",
          f"v_mov_b32 v{V2_DA}, v{V2_DC}", f"v_xor_b32 v{V2_DB}, 64, v{V2_DC}"]
    P.stampfn = (lambda i: stamp(a, opt, i)) if opt.get("hprobe") else (lambda i: None)
    P.main(a, 14, 8, f"s{S_K1}", "L2", sw, S2_IT)
    stamp(a, opt, 13)
    p2_final(a, P, opt)

def p2_final(a, P, opt):
    IN, XR = 184, 200
    def combine(f, tf):
        G = P.acc("G", f, tf); Sx = P.acc("S", f, tf); k = 24 + 2*tf
        if not opt.get("last2", 1):
            a(f"v_pk_mul_f32 v[{G}:{G+1}], v[{G}:{G+1}], v[{k}:{k+1}] op_sel_hi:[1,0]")
            a(f"v_pk_mul_f32 v[{G+2}:{G+3}], v[{G+2}:{G+3}], v[{k}:{k+1}] op_sel_hi:[1,0]")
        a(f"v_pk_fma_f32 v[{G}:{G+1}], v[{Sx}:{Sx+1}], v[{k}:{k+1}], v[{G}:{G+1}] op_sel:[0,1,0]")
        a(f"v_pk_fma_f32 v[{G+2}:{G+3}], v[{Sx+2}:{Sx+3}], v[{k}:{k+1}], v[{G+2}:{G+3}] op_sel:[0,1,0]")
    for f in range(4, 8) if not opt.get("sentfirst", 1) else []:
        for tf in range(2): combine(f, tf)
        G0 = P.acc("G", f, 0); G1 = P.acc("G", f, 1); O = P.acc("S", f, 0)
        a(f"v_cvt_pk_bf16_f32 v{O}, v{G0}, v{G0+1}"); a(f"v_cvt_pk_bf16_f32 v{O+1}, v{G0+2}, v{G0+3}")
        a(f"v_cvt_pk_bf16_f32 v{O+2}, v{G1}, v{G1+1}"); a(f"v_cvt_pk_bf16_f32 v{O+3}, v{G1+2}, v{G1+3}")
        a(f"buffer_store_dwordx4 v[{O}:{O+3}], v{V_LANE16}, s[{SRD_WT}:{SRD_WT+3}], s{S_K1} offen offset:{(f-4)*1024} sc0 sc1")
    stamp(a, opt, 14)
    if opt.get("sentfirst", 1): a("s_nop 7")
    for f in range(4):
        for tf in range(2): combine(f, tf)
    a(f"s_mov_b32 s{S_CNT}, 0x40000")
    for f in range(1, 4): a(f"v_xor_b32 v{235+f}, {64*f}, v232")
    a("s_waitcnt vmcnt(0)" if opt.get("last2", 1) else "s_waitcnt vmcnt(4)")
    a("L2_xchk:")
    a(f"v_max3_u32 v28, v{IN}, v{IN+1}, v{IN+2}")
    for k in range(3, 15, 2): a(f"v_max3_u32 v28, v28, v{IN+k}, v{IN+k+1}")
    a(f"v_max_u32 v28, v28, v{IN+15}")
    a("v_cmp_eq_u32 vcc, -1, v28")
    a("s_cmp_eq_u64 vcc, 0")
    a("s_cbranch_scc1 L2_xok")
    for t in P.xload: a(t)
    a("s_waitcnt vmcnt(0)")
    a(f"s_sub_u32 s{S_CNT}, s{S_CNT}, 1")
    a("s_cbranch_scc0 L2_xchk")
    a("L2_xok:")
    stamp(a, opt, 15)
    def half(tf):
        for f in range(4):
            G = P.acc("G", f, tf); O = IN + 4*f + 2*tf; U = XR + 4*(2*f + tf)
            a(f"v_lshlrev_b32 v{U}, 16, v{O}"); a(f"v_and_b32 v{U+1}, 0xffff0000, v{O}")
            a(f"v_lshlrev_b32 v{U+2}, 16, v{O+1}"); a(f"v_and_b32 v{U+3}, 0xffff0000, v{O+1}")
            a(f"v_pk_add_f32 v[{G}:{G+1}], v[{G}:{G+1}], v[{U}:{U+1}]")
            a(f"v_pk_add_f32 v[{G+2}:{G+3}], v[{G+2}:{G+3}], v[{U+2}:{U+3}]")
            a(f"ds_write_b128 v{232 if f == 0 else 235+f}, v[{G}:{G+3}] offset:{tf*4096}")
        for i in range(4*tf, 4*tf + 4):
            d = P.acc("G", 4 + (i >> 1), i & 1)
            a(f"ds_read_b128 v[{d}:{d+3}], v{234 + (i & 1)} offset:{i*1024}")
    def store(i, n):
        d = P.acc("G", 4 + (i >> 1), i & 1)
        a(f"s_mov_b32 s{S_T0}, {(4*(i >> 2) + 16*(i & 3))*4096}")
        a(f"s_waitcnt lgkmcnt({n})")
        a(f"buffer_store_dwordx4 v[{d}:{d+3}], v233, s[{SRD_O}:{SRD_O+3}], s{S_T0} offen {opt.get('ostore','sc0 sc1')}")
    half(0)
    if opt.get("opipe", 1):
        for i in range(4): store(i, 3 - i)
        half(1)
        for i in range(4, 8): store(i, 7 - i)
    else:
        half(1)
        for i in range(8): store(i, min(7 - i + (4 if i < 4 else 0), 15))
    a(f"""
    s_cmp_eq_u32 s2, 50
    s_cbranch_scc0 L2_noep
    s_cmp_eq_u32 s{S_W}, 0
    s_cbranch_scc0 L2_noep
    s_add_u32 s{SRD_T}, s{ptr(P_WS)}, {WS_EPOCH}
    s_addc_u32 s{SRD_T+1}, s{ptr(P_WS)+1}, 0
    v_mov_b32 v28, s{S_NONCE}
    v_mov_b32 v30, 0
    s_mov_b64 exec, 1
    buffer_store_dword v28, v30, s[{SRD_T}:{SRD_T+3}], 0 offen
    s_mov_b64 exec, -1
L2_noep:
    """)
    stamp(a, opt, 16)
    if opt.get("stamps"):
        a("s_waitcnt vmcnt(0)")
        stamp(a, opt, 17)
        stamp_flush(a, opt)

NAME = "gated_mix__ssm_conv_s5__glu_gated_geglu__prompt_kernel"
def fused(opt):
    a = Asm()
    a(header(["@launch grid=(256,1,1) block=(256,1,1) lds=163840"]))
    a(kernel_begin(NAME))
    common_prologue(a, opt)
    PA = p1_type(a, "A", opt)
    a("L1_B:")
    PB = p1_type(a, "B", opt)
    a("L1A_epi:")
    p1_epilogue(a, PA, opt)
    a("L1B_epi:")
    p1_epilogue(a, PB, opt)
    phase2(a, opt)
    a("L_done:")
    a("s_endpgm")
    a(".fill 8192, 4, 0xbf800000")
    a(kernel_desc(NAME, 256 + 172, 256))
    return a.text()

if __name__ == "__main__":
    import sys, json
    opt = json.loads(sys.argv[2]) if len(sys.argv) > 2 else {}
    name = sys.argv[1] if len(sys.argv) > 1 else "fu"
    if opt.get("p2_noadv"):
        _f = fused
        def fused(o):
            t = _f(o)
            i = t.index("L2_start:")
            h, tl = t[:i], t[i:]
            if "h" in o["p2_noadv"]: tl = tl.replace("s_add_u32 s78, s78, 4096", "s_add_u32 s78, s78, 0").replace("s_add_u32 s79, s79, 4096", "s_add_u32 s79, s79, 0").replace("s_add_u32 s78, s78, s94", "s_nop 0").replace("s_add_u32 s79, s79, s94", "s_nop 0")
            if "w" in o["p2_noadv"]: tl = tl.replace("s_add_u32 s52, s52, s77", "s_add_u32 s52, s52, 0").replace("s_sub_u32 s52, s52, 3200", "s_sub_u32 s52, s52, 3072")
            return h + tl
    open(name + "_st.s", "w").write(fused(dict(opt, stamps=True)))
    open(name + ".s", "w").write(fused(opt))
    open(name + "_l.s", "w").write(fused(dict(opt, stamps=True, lite=True)))
```
